```python
import torch

def _softmax(x, axis=-1):
    return torch.softmax(x, dim=axis)
def _gelu(x):
    return torch.nn.functional.gelu(x, approximate="tanh")
def _silu(x):
    return torch.nn.functional.silu(x)
def _sigmoid(x):
    return torch.sigmoid(x)
def _layernorm(x, axis=-1, eps=1e-5):
    m = x.mean(dim=axis, keepdim=True)
    v = x.var(dim=axis, keepdim=True, unbiased=False)
    return (x - m) / torch.sqrt(v + eps)
def _scatter_add(tgt, idx, src, axis=0):
    return tgt.clone().index_add_(axis, idx, src)
def _segment_sum(src, seg, n):
    out = torch.zeros((n,) + src.shape[1:], dtype=src.dtype)
    return out.index_add_(0, seg, src)
def _pad(x, pw):
    flat = tuple(v for pair in reversed(pw) for v in pair)
    return torch.nn.functional.pad(x, flat)

kernel_name = 'parallel_sum__ssm_conv_s5__glu_gated_bilinear__prompt'

def setup_inputs():

    _w = (lambda a: (lambda t: t.to(torch.bfloat16) if t.is_floating_point() else t)(torch.as_tensor(a)))
    def _A_setup():
        B, S, D = 1, 2048, 512
        P = D
        Lambda_re = -0.5 * (lambda _x: torch.exp(torch.as_tensor(_x)))((lambda *s: torch.randn(*s, dtype=torch.bfloat16) * 0.2)(P))
        Lambda_im = (lambda *s: torch.randn(*s, dtype=torch.bfloat16) * 0.8)(P) * 1.0
        B_re = (lambda *s: torch.randn(*s, dtype=torch.bfloat16) * 0.2)(P, D) * (D ** -0.5)
        B_im = (lambda *s: torch.randn(*s, dtype=torch.bfloat16) * 0.2)(P, D) * (D ** -0.5)
        C_re = (lambda *s: torch.randn(*s, dtype=torch.bfloat16) * 0.2)(D, P) * (P ** -0.5)
        C_im = (lambda *s: torch.randn(*s, dtype=torch.bfloat16) * 0.2)(D, P) * (P ** -0.5)
        log_dt = (lambda *s: torch.randn(*s, dtype=torch.bfloat16) * 0.2)(P) * 0.3 - 2.0
        Dskip = (lambda *s: torch.randn(*s, dtype=torch.bfloat16) * 0.05)(D)
        return {
            "x": _w((lambda *s: torch.randn(*s, dtype=torch.bfloat16) * 0.05)(B, S, D)),
            "Lambda_re": _w(Lambda_re),
            "Lambda_im": _w(Lambda_im),
            "B_re": _w(B_re),
            "B_im": _w(B_im),
            "C_re": _w(C_re),
            "C_im": _w(C_im),
            "log_dt": _w(log_dt),
            "Dskip": _w(Dskip),
        }
    _A_in = _A_setup()

    def _B_setup():
        B, S, D, F = 1, 2048, 512, 1376
        return {
            "x": _w((lambda *s: torch.randn(*s, dtype=torch.bfloat16) * 0.05)(B, S, D)),
            "w_gate": _w((lambda *s: torch.randn(*s, dtype=torch.bfloat16) * 0.4)(D, F) * (D ** -0.5)),
            "w_up": _w((lambda *s: torch.randn(*s, dtype=torch.bfloat16) * 0.4)(D, F) * (D ** -0.5)),
            "w_down": _w((lambda *s: torch.randn(*s, dtype=torch.bfloat16) * 0.4)(F, D) * (F ** -0.5)),
        }
    _B_in = _B_setup()

    return {
        "A_x": _A_in["x"],
        "A_Lambda_re": _A_in["Lambda_re"],
        "A_Lambda_im": _A_in["Lambda_im"],
        "A_B_re": _A_in["B_re"],
        "A_B_im": _A_in["B_im"],
        "A_C_re": _A_in["C_re"],
        "A_C_im": _A_in["C_im"],
        "A_log_dt": _A_in["log_dt"],
        "A_Dskip": _A_in["Dskip"],
        "B_x": _B_in["x"],
        "B_w_gate": _B_in["w_gate"],
        "B_w_up": _B_in["w_up"],
        "B_w_down": _B_in["w_down"],
    }

def reference(A_x, A_Lambda_re, A_Lambda_im, A_B_re, A_B_im, A_C_re, A_C_im, A_log_dt, A_Dskip, B_x, B_w_gate, B_w_up, B_w_down):
    def _A_ref(x, Lambda_re, Lambda_im, B_re, B_im, C_re, C_im, log_dt, Dskip):
        Bsz, L, H = x.shape
        Lam = Lambda_re + 1j * Lambda_im
        Bmat = B_re + 1j * B_im
        Cmat = C_re + 1j * C_im
        dt = torch.exp(log_dt)
        Lam_bar = torch.exp(dt * Lam)
        B_bar = ((Lam_bar - 1.0) / Lam)[:, None] * Bmat
        Bu = torch.einsum("bld,pd->blp", x + 0j, B_bar)
        h = torch.zeros_like(Bu[:, 0, :])
        hs = []
        for t in range(L):
            h = Lam_bar[None, :] * h + Bu[:, t, :]
            hs.append(h)
        hseq = torch.stack(hs, 1)
        y = 2.0 * torch.einsum("blp,dp->bld", hseq, Cmat).real + x * Dskip[None, None, :]
        return y

    def _B_ref(x, w_gate, w_up, w_down):
        g = torch.einsum("bsd,df->bsf", x, w_gate)
        u = torch.einsum("bsd,df->bsf", x, w_up)
        h = g * u
        return torch.einsum("bsf,fd->bsd", h, w_down)

    x = A_x
    xn = _layernorm(x, axis=-1)
    return x + _A_ref(xn, A_Lambda_re, A_Lambda_im, A_B_re, A_B_im, A_C_re, A_C_im, A_log_dt, A_Dskip) + _B_ref(xn, B_w_gate, B_w_up, B_w_down)
```

```python
KN = "parallel_sum__ssm_conv_s5__glu_gated_bilinear__prompt_kernel"
class Asm:
    def __init__(self):
        self.lines = []
        self.kern = []
        self.launch = []
    def __call__(self, s=""):
        for l in s.split("\n"):
            l = l.strip()
            if not l: continue
            if l.endswith(":"): self.lines.append(l)
            else: self.lines.append("    " + l)
    def c(self, s): self.lines.append("    ; " + s)
    def begin(self, name):
        self.lines += [f".globl {name}", ".p2align 8", f".type {name},@function", f"{name}:"]
    def end(self, name, vgpr, sgpr=102, accum=None):
        if accum is None: accum = min(256, (vgpr + 3)//4*4)
        self.kern.append((name, vgpr, sgpr, accum))
    def add_launch(self, name, grid, block, lds):
        self.launch.append((name, grid, block, lds))
    def text(self, header=""):
        o = []
        for l in header.split("\n"):
            if l.strip(): o.append("; " + l.strip())
        for (n, g, b, lds) in self.launch:
            if len(self.launch) == 1 and n == KN: o.append(f"; @launch grid=({g},1,1) block=({b},1,1) lds={lds}")
            else: o.append(f"; @launch kernel={n} grid=({g},1,1) block=({b},1,1) lds={lds}")
        o += ['.amdgcn_target "amdgcn-amd-amdhsa--gfx950"', ".text"]
        o += self.lines
        o += ['.section .rodata,"a"']
        for (n, v, s, a) in self.kern:
            o += [".p2align 6", f".amdhsa_kernel {n}", f"  .amdhsa_next_free_vgpr {v}", f"  .amdhsa_next_free_sgpr {s}",
                  f"  .amdhsa_accum_offset {a}", "  .amdhsa_group_segment_fixed_size 0", "  .amdhsa_kernarg_size 128",
                  "  .amdhsa_user_sgpr_count 2", "  .amdhsa_user_sgpr_kernarg_segment_ptr 1",
                  "  .amdhsa_system_sgpr_workgroup_id_x 1", "  .amdhsa_float_denorm_mode_32 3", ".end_amdhsa_kernel"]
        return "\n".join(o) + "\n"
def srd(a, d, b, nbytes):
    a(f"s_mov_b32 s{d}, s{b}")
    a(f"s_and_b32 s{d+1}, s{b+1}, 0xffff")
    a(f"s_mov_b32 s{d+2}, {nbytes}")
    a(f"s_mov_b32 s{d+3}, 0x00020000")
```

```python
import sys; sys.path.insert(0,"work")
from g import *
from sched import *
NKS = 150
HD_OFF = 0
HD_BYTES = 32*NKS*2048
ST_OFF   = 10<<20
AGG_OFF  = (10<<20) + (64<<10)
EPOCH_OFF = (10<<20) + (256<<10)
STAMP_OFF = 16<<20
WS_USED = 11<<20
LOG2E = 0x3fb8aa3b
INV2PI = 0x3e22f983
BIG = 0x7ffffff0

def vr(b, n=4): return f"v[{b}:{b+n-1}]"
def ar(b, n=4): return f"a[{b}:{b+n-1}]"

def stamp(p, slot): p(f"s_memrealtime s[{80+2*slot}:{81+2*slot}]")
def stamp_flush(p, nslots, off, lab):
    p("s_waitcnt vmcnt(0) lgkmcnt(0)")
    p(f"s_lshl_b32 s3, s2, 6\ns_add_u32 s3, s3, {off}\nv_mov_b32 v2, s3")
    p(f"v_cmp_eq_u32 vcc, 0, v0\ns_and_saveexec_b64 s[78:79], vcc\ns_cbranch_execz {lab}")
    for s in range(nslots):
        p(f"v_mov_b32 v4, s{80+2*s}\nv_mov_b32 v5, s{81+2*s}")
        p(f"global_store_dwordx2 v2, v[4:5], s[34:35] offset:{8*s}\ns_nop 1")
    p(f"{lab}:\ns_mov_b64 exec, s[78:79]")

def srdp(p, d, b, nbytes):
    p(f"s_mov_b32 s{d}, s{b}\ns_and_b32 s{d+1}, s{b+1}, 0xffff\ns_mov_b32 s{d+2}, {nbytes}\ns_mov_b32 s{d+3}, 0x00020000")

def interleave(main, fill, per=3):
    nm = sum(1 for m in main if (m[0] if isinstance(m, tuple) else m).startswith('v_mfma'))
    out = []; k = 0; seen = 0
    for m in main:
        out.append(m)
        if (m[0] if isinstance(m, tuple) else m).startswith('v_mfma'):
            seen += 1
            tgt = min(len(fill), (len(fill)*seen + nm - 1)//nm) if per is None else min(len(fill), k+per)
            while k < tgt: out.append(fill[k]); k += 1
    out += fill[k:]
    return out
def put(p, lst):
    for m in lst:
        if isinstance(m, tuple):
            if m[0] == '@': p.wait_tag(m[1])
            else: p(m[0], m[1])
        else: p(m)
def L(s): return [x.strip() for x in s.split('\n') if x.strip()]

def cmul(dr, di, ar_, ai, br, bi, t):
    return L(f"""v_mul_f32 v{t}, v{ai}, v{bi}
    v_mul_f32 v{t+1}, v{ai}, v{br}
    v_fma_f32 v{t}, v{ar_}, v{br}, -v{t}
    v_fma_f32 v{di}, v{ar_}, v{bi}, v{t+1}
    v_mov_b32 v{dr}, v{t}""")
def csq(dr, di, r, i, t):
    return L(f"""v_mul_f32 v{t}, v{i}, v{i}
    v_mul_f32 v{t+1}, v{r}, v{i}
    v_fma_f32 v{dr}, v{r}, v{r}, -v{t}
    v_add_f32 v{di}, v{t+1}, v{t+1}""")

def load_args(p):
    p("s_load_dwordx16 s[4:19], s[0:1], 0\ns_load_dwordx16 s[20:35], s[0:1], 64")

def code_prefetch(p, nbytes, vt=2):
    p("s_getpc_b64 s[76:77]")
    p(f"v_lshlrev_b32 v{vt}, 7, v0")
    for k in range((nbytes + 32767)//32768):
        if k: p(f"v_add_u32 v{vt}, 32768, v{vt}")
        p(f"v_min_u32 v{vt+1}, {nbytes-128}, v{vt}")
        p(f"global_load_dword v{vt+2}, v{vt+1}, s[76:77]", "pf")

def gen_k1(a, name, diag=False, xmap=1, lag=10, codebytes=20480, touch=False):
    p = Prog()
    X = 128; SRE = 96; SIM = 112
    GACC = 0; WF = 96
    NWF = 16
    LANE=1; XA=8
    BA=16
    GOFF=24
    GA=27
    AR,AI=28,29; A16R,A16I=30,31; PWR,PWI=32,33; GR,GI=34,35
    W0R,W0I,W1R,W1I=36,37,38,39
    MR,RS=40,41
    HDOFF=42; AGST=43; AGLD=44; SEGW=45; SEGR=46; TRW=47; TRR=48; EPV=49; POR,POI=50,51
    SEL=52
    T=56
    L_BRE=131072; L_BIM=98304; L_SCR=147456
    slot = [0,24576,49152,73728,98304,122880,0,24576]
    if diag: stamp(p,0)
    p(f"s_cmp_ge_u32 s2, 256\ns_cbranch_scc1 {name}_done")
    load_args(p)
    code_prefetch(p, codebytes, 2)
    p(f"v_lshrrev_b32 v5, 6, v0\nv_and_b32 v{LANE}, 63, v0\nv_readfirstlane_b32 s60, v5")
    if xmap == 1:
        p("s_and_b32 s3, s2, 7\ns_lshr_b32 s63, s2, 3")
        p("s_and_b32 s61, s3, 1\ns_lshl_b32 s61, s61, 3\ns_and_b32 s64, s63, 7\ns_add_u32 s61, s61, s64")
        p("s_lshr_b32 s62, s3, 1\ns_lshl_b32 s62, s62, 2\ns_lshr_b32 s64, s63, 3\ns_add_u32 s62, s62, s64")
    else:
        p("s_and_b32 s3, s2, 7\ns_lshr_b32 s63, s2, 3")
        p("s_lshl_b32 s61, s3, 1\ns_lshr_b32 s64, s63, 4\ns_add_u32 s61, s61, s64\ns_and_b32 s62, s63, 15")
    p(f"v_lshlrev_b32 v{T}, 4, v{LANE}")
    for r in range(1,16): p(f"v_xor_b32 v{T+r}, {16*r}, v{T}")
    p("s_lshl_b32 s64, s61, 7\ns_lshl_b32 s65, s60, 5\ns_add_u32 s64, s64, s65\ns_lshl_b32 s64, s64, 10")
    p("s_lshl_b32 s65, s60, 15")
    p("s_waitcnt lgkmcnt(0)")
    srdp(p, 36, 4, 2048*1024)
    for q in range(8):
        tok = 16*(q&1) + 4*(q>>1)
        p(f"s_add_u32 m0, s65, {q*4096}\ns_add_u32 s66, s64, {tok*1024}")
        for e in range(4):
            p(f"buffer_load_dwordx4 v{T+((4*q+e)&15)}, s[36:39], s66 offen offset:{e*1024} lds", "x")
    srdp(p, 40, 10, 512*1024); srdp(p, 44, 12, 512*1024)
    p("s_lshl_b32 s67, s62, 5\ns_lshl_b32 s68, s60, 3\ns_add_u32 s67, s67, s68\ns_lshl_b32 s67, s67, 10")
    p("s_lshl_b32 s68, s60, 13")
    p("s_and_b32 s69, s60, 1\ns_lshl_b32 s69, s69, 7")
    BV = T+16
    for e in range(8): p(f"v_xor_b32 v{BV+e}, s69, v{T+e}")
    def dmaB(srd_, lbase, tag):
        o = []
        for h in range(2):
            o += L(f"s_add_u32 m0, s68, {lbase + h*4096}\ns_add_u32 s66, s67, {h*4096}")
            for e in range(4):
                o.append((f"buffer_load_dwordx4 v{BV+4*h+e}, s[{srd_}:{srd_+3}], s66 offen offset:{e*1024} lds", tag))
        return o
    put(p, dmaB(40, L_BRE, "bre"))
    if touch:
        p(f"s_lshl_b32 s3, s2, 8\nv_add_u32 v5, s3, v0\nv_lshlrev_b32 v5, 5, v5\nv_min_u32 v6, {512*1024-4}, v5\nv_min_u32 v5, {1376*1024-4}, v5")
        p("global_load_dword v93, v6, s[14:15]\nglobal_load_dword v94, v6, s[16:17]\nglobal_load_dword v95, v5, s[28:29]")
    P0 = T+24
    p(f"v_and_b32 v{P0}, 31, v0\ns_lshl_b32 s70, s62, 5\nv_add_u32 v{P0+1}, s70, v{P0}\nv_lshlrev_b32 v{P0+2}, 1, v{P0+1}")
    p(f"global_load_ushort v{P0+3}, v{P0+2}, s[6:7]\nglobal_load_ushort v{P0+4}, v{P0+2}, s[8:9]\nglobal_load_ushort v{P0+5}, v{P0+2}, s[18:19]")
    p(f"s_lshl_b32 s3, s62, 6\ns_add_u32 s3, s3, {EPOCH_OFF}\ns_add_u32 s72, s34, s3\ns_addc_u32 s73, s35, 0\ns_load_dword s71, s[72:73], 0")
    p(f"s_cmp_eq_u32 s61, 15\ns_cselect_b32 s3, s3, {BIG}\nv_mov_b32 v5, s3\nv_mov_b32 v6, {BIG}\nv_cmp_eq_u32 vcc, 0, v0\nv_cndmask_b32 v{EPV}, v6, v5, vcc")
    srdp(p, 48, 24, 512*2752); srdp(p, 52, 26, 512*2752); srdp(p, 56, 34, WS_USED)
    p(f"v_lshrrev_b32 v2, 5, v{LANE}\nv_and_b32 v3, 15, v{LANE}\nv_xor_b32 v3, v2, v3\nv_lshlrev_b32 v3, 4, v3\nv_lshl_add_u32 v3, v{P0}, 10, v3")
    for s in range(8):
        p(f"v_xor_b32 v6, {32*s}, v3\nv_add_u32 v{XA+s}, s65, v6\nv_add_u32 v{BA+s}, {L_BIM}, v6")
    for pp in range(3):
        p(f"v_add_u32 v6, {64*pp}, v{LANE}\nv_mul_u32_u24 v7, {(65536+11)//12}, v6\nv_lshrrev_b32 v7, 16, v7\nv_mul_u32_u24 v5, 12, v7\nv_sub_u32 v6, v6, v5")
        p(f"v_mul_u32_u24 v7, 2752, v7\nv_lshl_add_u32 v{GOFF+pp}, v6, 4, v7")
        if pp: p(f"v_subrev_u32 v{GOFF+pp}, {1024*pp}, v{GOFF+pp}")
    p(f"v_bfe_u32 v5, v{LANE}, 2, 2\nv_lshl_add_u32 v5, v2, 3, v5\nv_mul_u32_u24 v{GA}, 192, v5")
    p(f"v_bfe_u32 v5, v{LANE}, 4, 1\nv_lshl_add_u32 v{GA}, v5, 5, v{GA}\nv_and_b32 v5, 3, v{LANE}\nv_lshl_add_u32 v{GA}, v5, 3, v{GA}")
    p("s_mul_i32 s70, s62, 3\ns_lshl_b32 s74, s62, 1\ns_add_u32 s74, s74, 11\ns_cmp_lt_u32 s62, 11\ns_cselect_b32 s70, s70, s74")
    p("s_lshl_b32 s74, s70, 6")
    p(f"s_mul_i32 s75, s60, {16*2752}\ns_add_u32 s74, s74, s75")
    p(f"s_mul_i32 s75, s60, 6144")
    p(f"v_bfe_u32 v5, v{LANE}, 4, 1\nv_bfe_u32 v6, v{LANE}, 2, 1\nv_cmp_eq_u32 vcc, v5, v6\nv_mov_b32 v5, 0x3f803f80\nv_cndmask_b32 v{SEL}, 0, v5, vcc")
    for e in range(1,4): p(f"v_mov_b32 v{SEL+e}, v{SEL}")
    p(f"s_lshl_b32 s3, s61, 1\ns_lshr_b32 s63, s60, 1\ns_add_u32 s3, s3, s63\ns_mul_i32 s3, s3, {NKS*2048}\ns_and_b32 s63, s60, 1\ns_lshl_b32 s63, s63, 10\ns_add_u32 s3, s3, s63")
    p(f"v_lshlrev_b32 v{HDOFF}, 4, v{LANE}\nv_add_u32 v{HDOFF}, s3, v{HDOFF}")
    p(f"s_lshl_b32 s3, s61, 13\ns_add_u32 s3, s3, {AGG_OFF}\nv_lshl_add_u32 v5, v{P0+1}, 4, s3\nv_mov_b32 v6, {BIG}\nv_cmp_gt_u32 vcc, 32, v0\nv_cndmask_b32 v{AGST}, v6, v5, vcc")
    p(f"s_lshl_b32 s3, s60, 15\ns_add_u32 s3, s3, {AGG_OFF}\nv_lshl_add_u32 v5, v{P0+1}, 4, s3\nv_lshl_add_u32 v{AGLD}, v2, 13, v5")
    p(f"v_lshlrev_b32 v{SEGW}, 3, v0\nv_add_u32 v{SEGW}, {L_SCR}, v{SEGW}\nv_lshlrev_b32 v{SEGR}, 3, v{P0}\nv_add_u32 v{SEGR}, {L_SCR}, v{SEGR}")
    p(f"s_lshl_b32 s3, s60, 12\ns_add_u32 s3, s3, {L_SCR}\nv_lshlrev_b32 v5, 6, v{P0}\nv_lshl_add_u32 v5, v2, 5, v5\nv_add_u32 v{TRW}, s3, v5")
    p(f"v_bfe_u32 v5, v{LANE}, 2, 2\nv_lshl_add_u32 v5, v2, 3, v5\nv_lshlrev_b32 v5, 6, v5\nv_and_b32 v6, 1, v{LANE}\nv_lshl_add_u32 v5, v6, 5, v5")
    p(f"v_bfe_u32 v6, v{LANE}, 4, 1\nv_lshl_add_u32 v5, v6, 4, v5\nv_bfe_u32 v6, v{LANE}, 1, 1\nv_lshl_add_u32 v5, v6, 3, v5\nv_add_u32 v{TRR}, s3, v5")
    lr, li, dt = P0+3, P0+4, P0+5
    t = P0+6
    p(f"v_lshlrev_b32 v{lr}, 16, v{lr}\nv_lshlrev_b32 v{li}, 16, v{li}\nv_lshlrev_b32 v{dt}, 16, v{dt}")
    p(f"v_mul_f32 v{dt}, {LOG2E}, v{dt}\nv_exp_f32 v{dt}, v{dt}\nv_cvt_pk_bf16_f32 v{dt}, v{dt}, v{dt}\nv_and_b32 v{dt}, 0xffff0000, v{dt}")
    p(f"v_mul_f32 v{t}, v{dt}, v{lr}\nv_mul_f32 v{t+1}, v{dt}, v{li}\nv_mul_f32 v{t}, {LOG2E}, v{t}\nv_exp_f32 v{t}, v{t}")
    p(f"v_mul_f32 v{t+1}, {INV2PI}, v{t+1}\nv_rndne_f32 v{t+2}, v{t+1}\nv_sub_f32 v{t+1}, v{t+1}, v{t+2}\nv_cos_f32 v{t+2}, v{t+1}\nv_sin_f32 v{t+3}, v{t+1}")
    p(f"v_mul_f32 v{AR}, v{t}, v{t+2}\nv_mul_f32 v{AI}, v{t}, v{t+3}")
    p(f"v_add_f32 v{t}, -1.0, v{AR}\nv_mul_f32 v{t+1}, v{lr}, v{lr}\nv_fmac_f32 v{t+1}, v{li}, v{li}\nv_rcp_f32 v{t+1}, v{t+1}")
    p(f"v_mul_f32 v{t+2}, v{t}, v{lr}\nv_fmac_f32 v{t+2}, v{AI}, v{li}\nv_mul_f32 v{t+3}, v{AI}, v{lr}\nv_fma_f32 v{t+3}, -v{t}, v{li}, v{t+3}")
    p(f"v_add_f32 v{t+1}, v{t+1}, v{t+1}\nv_mul_f32 v{GR}, v{t+2}, v{t+1}\nv_mul_f32 v{GI}, v{t+3}, v{t+1}")
    q = T
    put(p, csq(q, q+1, AR, AI, t)); put(p, csq(q+2, q+3, q, q+1, t)); put(p, csq(q, q+1, q+2, q+3, t)); put(p, csq(A16R, A16I, q, q+1, t))
    put(p, csq(q, q+1, A16R, A16I, t))
    put(p, csq(q+2, q+3, q, q+1, t))
    put(p, csq(q+4, q+5, q+2, q+3, t))
    put(p, csq(q+6, q+7, q+4, q+5, t)); put(p, csq(q+8, q+9, q+6, q+7, t)); put(p, csq(q+10, q+11, q+8, q+9, t))
    def selpow(dr, di, nreg, facs, u):
        for b, (fr, fi) in enumerate(facs):
            p(f"v_and_b32 v{u}, {1<<b}, v{nreg}\nv_cmp_ne_u32 vcc, 0, v{u}")
            tr_, ti_ = (dr, di) if b == 0 else (u+1, u+2)
            p(f"v_cndmask_b32 v{tr_}, 1.0, v{fr}, vcc\nv_cndmask_b32 v{ti_}, 0, v{fi}, vcc")
            if b: put(p, cmul(dr, di, dr, di, u+1, u+2, t))
    p(f"v_lshrrev_b32 v5, 5, v0")
    selpow(PWR, PWI, 5, [(A16R,A16I),(q,q+1),(q+2,q+3)], q+12)
    p(f"s_lshl_b32 s3, s60, 2\ns_sub_u32 s3, s61, s3\ns_sub_u32 s3, s3, 1\nv_sub_u32 v5, s3, v2\nv_subrev_u32 v6, 2, v5")
    Af = [(q+4,q+5),(q+6,q+7),(q+8,q+9),(q+10,q+11)]
    selpow(W0R, W0I, 5, Af, q+12); selpow(W1R, W1I, 6, Af, q+12)
    p("v_cmp_le_i32 s[96:97], 0, v5\nv_cmp_le_i32 s[98:99], 0, v6")
    p("s_waitcnt lgkmcnt(0)\ns_mul_i32 s71, s71, 0x9E3779B1\ns_add_u32 s71, s71, 0x7F4A7C15")
    if diag: stamp(p,1)
    p.wait_tag("x")
    if diag: stamp(p,2)
    SUM = T; DG = SRE
    for s in range(32):
        p(f"ds_read_b128 {vr(X+4*s)}, v{XA+(s&7)} offset:{(s>>3)*256}")
        if s >= 6:
            u = s-6
            p(f"v_mfma_f32_16x16x32_bf16 {vr(SUM)}, {vr(SEL)}, {vr(X+4*u)}, {vr(SUM) if u else 0}")
            p(f"v_mfma_f32_32x32x16_bf16 {vr(DG,16)}, {vr(X+4*u)}, {vr(X+4*u)}, {vr(DG,16) if u else 0}")
    p.wait_tag("bre")
    p("s_waitcnt lgkmcnt(0)\ns_barrier")
    def dmaG(tt):
        o = []
        o += L(f"s_add_u32 s66, s74, {tt*64*2752}")
        for m, sr in enumerate((48, 52)):
            o += L(f"s_add_u32 m0, s75, {slot[tt] + m*3072}")
            for pp in range(3):
                o.append((f"buffer_load_dwordx4 v{GOFF+pp}, s[{sr}:{sr+3}], s66 offen offset:{pp*1024} lds", f"g{tt}"))
        return o
    tail = []
    for u in range(26, 32):
        tail.append(f"v_mfma_f32_16x16x32_bf16 {vr(SUM)}, {vr(SEL)}, {vr(X+4*u)}, {vr(SUM)}")
        tail.append(f"v_mfma_f32_32x32x16_bf16 {vr(DG,16)}, {vr(X+4*u)}, {vr(X+4*u)}, {vr(DG,16)}")
    put(p, interleave(tail, dmaB(44, L_BIM, "bim") + dmaG(0) + dmaG(1) + dmaG(2) + dmaG(3), None))
    n = 16; cur = DG
    for bit in (0,1,3,4):
        p(f"v_and_b32 v5, {1<<bit}, v{LANE}\nv_cmp_ne_u32 vcc, 0, v5")
        n //= 2
        for k in range(n): p(f"v_cndmask_b32 v{DG+k}, v{DG+2*k}, v{DG+2*k+1}, vcc")
    p(f"v_bfe_u32 v5, v{LANE}, 2, 1\nv_cmp_eq_u32 vcc, v5, v2\nv_cndmask_b32 v{DG}, 0, v{DG}, vcc\nv_mov_b32 v{DG+1}, v{DG}")
    p(f"v_permlane32_swap_b32 v{DG}, v{DG+1}\nv_add_f32 v{DG}, v{DG}, v{DG+1}")
    p(f"v_mul_f32 v5, 0x3b000000, v{SUM}\nv_mul_f32 v6, 0x3b000000, v{DG}\nv_fma_f32 v6, -v5, v5, v6\nv_max_f32 v6, 0, v6")
    p(f"v_cvt_pk_bf16_f32 v5, v5, v6\nv_and_b32 v6, 0xffff0000, v5\nv_lshlrev_b32 v{T+4}, 16, v5")
    p(f"v_add_f32 v6, 0x3727c5ac, v6\nv_cvt_pk_bf16_f32 v6, v6, v6\nv_and_b32 v6, 0xffff0000, v6\nv_sqrt_f32 v6, v6\nv_cvt_pk_bf16_f32 v6, v6, v6\nv_and_b32 v6, 0xffff0000, v6")
    p(f"v_rcp_f32 v{RS}, v6\nv_mul_f32 v{MR}, v{T+4}, v{RS}\nv_mov_b32 v{T+5}, v{RS}")
    p(f"v_bfe_u32 v5, v{LANE}, 2, 1\nv_lshlrev_b32 v5, 4, v5\nv_bfe_u32 v6, v{LANE}, 3, 2\nv_lshl_add_u32 v5, v6, 2, v5\nv_and_b32 v6, 3, v{LANE}\nv_add_u32 v5, v5, v6")
    p(f"s_lshr_b32 s3, s64, 7\ns_add_u32 s3, s3, {ST_OFF}\ns_cmp_eq_u32 s62, 0\ns_cselect_b32 s3, s3, {BIG}\nv_lshl_add_u32 v5, v5, 3, s3")
    p(f"buffer_store_dwordx2 {vr(T+4,2)}, v5, s[56:59], 0 offen")
    if diag: stamp(p,3)
    def ln(s):
        o = []
        for e in range(4):
            r = X+4*s+e; u = T+8+2*(e&1)
            o += L(f"v_lshlrev_b32 v{u}, 16, v{r}\nv_and_b32 v{u+1}, 0xffff0000, v{r}\nv_fma_f32 v{u}, v{u}, v{RS}, -v{MR}\nv_fma_f32 v{u+1}, v{u+1}, v{RS}, -v{MR}\nv_cvt_pk_bf16_f32 v{r}, v{u}, v{u+1}")
        return o
    seq = []
    for s in range(32+lag):
        if s < 32: seq.append(('re', s))
        if s >= lag: seq.append(('im', s-lag))
    gseq = [(tt, k, b, m) for tt in range(8) for k in range(4) for b in range(3) for m in range(2)]
    allf = seq + gseq
    RA = 6
    def frag_read(n):
        f = allf[n]; d = WF + 4*(n % NWF); o = []
        if len(f) == 2:
            kind, s = f
            if kind == 'im' and s == 0: o += [('@','bim'), "s_barrier"]
            off = (L_BRE-L_BIM if kind == 're' else 0) + (s>>3)*256
            o.append(f"ds_read_b128 {ar(d)}, v{BA+(s&7)} offset:{off}")
        else:
            tt, k, b, m = f
            if k == 0 and b == 0 and m == 0:
                o += [('@', f"g{tt}"), ('BAR', tt)]
            off = k*6144 + m*3072 + 64*b
            o.append(f"ds_read_b64_tr_b16 {ar(d,2)}, v{T+12} offset:{off}")
            o.append(f"ds_read_b64_tr_b16 {ar(d+2,2)}, v{T+12} offset:{off+768}")
        return o
    def mf(n):
        f = allf[n]; d = WF + 4*(n % NWF)
        if len(f) == 2:
            kind, s = f; acc = SRE if kind == 're' else SIM
            return f"v_mfma_f32_32x32x16_bf16 {vr(acc,16)}, {vr(X+4*s)}, {ar(d)}, {vr(acc,16) if s else 0}"
        tt, k, b, m = f; s = 4*tt+k; acc = GACC + 32*b + 16*m
        return f"v_mfma_f32_32x32x16_bf16 {ar(acc,16)}, {ar(d)}, {vr(X+4*s)}, {ar(acc,16) if s else 0}"
    F = {tt: [] for tt in range(-1, 9)}
    H = T+16
    def step(dr, di, hr, hi, ur, ui, cr, ci):
        return L(f"v_fma_f32 v{dr}, v{cr}, v{hr}, v{ur}\nv_fma_f32 v{di}, v{cr}, v{hi}, v{ui}\nv_fma_f32 v{dr}, -v{ci}, v{hi}, v{dr}\nv_fma_f32 v{di}, v{ci}, v{hr}, v{di}")
    f = []
    cur = (SRE, SIM)
    for r in range(1, 16):
        d = (H + 2*(r&1), H + 2*(r&1) + 1)
        f += step(d[0], d[1], cur[0], cur[1], SRE+r, SIM+r, AR, AI); cur = d
    f.append((f"ds_write_b64 v{SEGW}, {vr(cur[0],2)}", "sw1"))
    f += ["s_nop 0"]*6 + [('@', "sw1")]
    F[0] = f
    f = []
    E = T+20
    for sg in range(8): f.append(f"ds_read_b64 {vr(E+2*sg,2)}, v{SEGR} offset:{256*sg}")
    f += L(f"v_lshrrev_b32 v2, 5, v0\nv_mov_b32 v{POR}, 0\nv_mov_b32 v{POI}, 0")
    cur = (E, E+1)
    for sg in range(1, 9):
        if sg < 8:
            f += L(f"v_cmp_eq_u32 vcc, {sg}, v2")
            d = (E+2*sg, E+2*sg+1)
            st = step(d[0], d[1], cur[0], cur[1], d[0], d[1], A16R, A16I)
            f += st[:2]
            f += L(f"v_cndmask_b32 v{POR}, v{POR}, v{cur[0]}, vcc\nv_cndmask_b32 v{POI}, v{POI}, v{cur[1]}, vcc")
            f += st[2:]
            cur = d
    f += L(f"v_mov_b32 v{H}, v{cur[0]}\nv_mov_b32 v{H+1}, s71\nv_mov_b32 v{H+2}, v{cur[1]}\nv_mov_b32 v{H+3}, s71")
    f.append(f"buffer_store_dwordx4 {vr(H)}, v{AGST}, s[56:59], 0 offen sc1")
    F[1] = dmaG(4) + dmaG(5) + f
    F[2] = dmaG(6)
    F[3] = dmaG(7)
    PL = E
    polld = [f"buffer_load_dwordx4 {vr(PL)}, v{AGLD}, s[56:59], 0 offen sc1", f"buffer_load_dwordx4 {vr(PL+4)}, v{AGLD}, s[56:59], s63 offen sc1"]
    F[3] = F[3] + ["s_mov_b32 s63, 16384", "s_mov_b32 s78, 20000"]
    F[4] = ["s_nop 0"]*24 + polld
    chk = L(f"""v_cmp_ne_u32 vcc, s71, v{PL+1}
    v_cmp_ne_u32 s[100:101], s71, v{PL+3}
    s_or_b64 vcc, vcc, s[100:101]
    s_and_b64 s[94:95], vcc, s[96:97]
    v_cmp_ne_u32 vcc, s71, v{PL+5}
    v_cmp_ne_u32 s[100:101], s71, v{PL+7}
    s_or_b64 vcc, vcc, s[100:101]
    s_and_b64 vcc, vcc, s[98:99]
    s_or_b64 s[94:95], s[94:95], vcc""")
    f = ["s_nop 0"]*20 + [("CHK", None)]
    f += L(f"v_cndmask_b32 v{PL}, 0, v{PL}, s[96:97]\nv_cndmask_b32 v{PL+2}, 0, v{PL+2}, s[96:97]\nv_cndmask_b32 v{PL+4}, 0, v{PL+4}, s[98:99]\nv_cndmask_b32 v{PL+6}, 0, v{PL+6}, s[98:99]")
    f += L(f"v_mul_f32 v{H}, v{W0R}, v{PL}\nv_mul_f32 v{H+1}, v{W0R}, v{PL+2}\nv_fma_f32 v{H}, -v{W0I}, v{PL+2}, v{H}\nv_fma_f32 v{H+1}, v{W0I}, v{PL}, v{H+1}")
    f += step(H+2, H+3, PL+4, PL+6, H, H+1, W1R, W1I)
    f.append((f"ds_write_b64 v{SEGW}, {vr(H+2,2)} offset:2048", "sw2"))
    f += ["s_nop 0"]*6 + [('@', "sw2")]
    F[5] = f
    f = []
    for sg in range(8): f.append(f"ds_read_b64 {vr(E+2*sg,2)}, v{SEGR} offset:{2048+256*sg}")
    f += L(f"v_mov_b32 v5, s71\nbuffer_store_dword v5, v{EPV}, s[56:59], 0 offen sc1")
    for sg in range(1, 8): f += L(f"v_add_f32 v{E}, v{E}, v{E+2*sg}\nv_add_f32 v{E+1}, v{E+1}, v{E+2*sg+1}")
    f += step(H, H+1, E, E+1, POR, POI, PWR, PWI)
    cur = (H, H+1)
    for r in range(16):
        f += step(SRE+r, SIM+r, cur[0], cur[1], SRE+r, SIM+r, AR, AI); cur = (SRE+r, SIM+r)
    f2 = []
    O = E
    for r in range(0, 16, 2):
        for e in range(2):
            rr, ii = SRE+r+e, SIM+r+e
            f2 += L(f"v_mul_f32 v{H+e}, v{GR}, v{rr}\nv_mul_f32 v{H+2+e}, v{GI}, v{rr}\nv_fma_f32 v{H+e}, -v{GI}, v{ii}, v{H+e}\nv_fma_f32 v{H+2+e}, -v{GR}, v{ii}, -v{H+2+e}")
        f2 += L(f"v_cvt_pk_bf16_f32 v{O+r//2}, v{H}, v{H+1}\nv_cvt_pk_bf16_f32 v{O+8+r//2}, v{H+2}, v{H+3}")
    for m in range(2):
        for h in range(2): f2.append(f"ds_write_b128 v{TRW}, {vr(O+8*m+4*h)} offset:{2048*m+16*h}")
    for m in range(2):
        for s in range(2):
            d = SRE + 8*m + 4*s
            f2.append(f"ds_read_b64_tr_b16 {vr(d,2)}, v{TRR} offset:{2048*m + 1024*s}")
            f2.append(f"ds_read_b64_tr_b16 {vr(d+2,2)}, v{TRR} offset:{2048*m + 1024*s + 256}")
    f2 += L("s_lshl_b32 s3, s62, 12\ns_add_u32 s63, s3, %d" % (32*2048))
    for m in range(2):
        for s in range(2):
            d = SRE + 8*m + 4*s
            f2.append(f"buffer_store_dwordx4 {vr(d)}, v{HDOFF}, s[56:59], {'s3' if m == 0 else 's63'} offen offset:{2048*s}")
    F[6] = f; F[7] = f2
    put(p, ln(0))
    for n in range(RA): put(p, frag_read(n))
    main = []
    segs = {-1: []}; curseg = -1
    nS = len(seq)
    lnq = []
    for n in range(len(allf)):
        segs[curseg].append(mf(n))
        if n < nS and allf[n][0] == 're' and allf[n][1] < 31:
            segs[curseg].append(('LN', allf[n][1]+1))
        if n + RA < len(allf):
            for x in frag_read(n+RA):
                if isinstance(x, tuple) and x[0] == 'BAR':
                    curseg = x[1]; segs[curseg] = ["s_barrier", f"v_add_u32 v{T+12}, {slot[x[1]]}, v{GA}"]
                else: segs[curseg].append(x)
    for sg in range(-1, 8):
        lst = []
        for x in segs[sg]:
            if isinstance(x, tuple) and x[0] == 'LN': lst += ln(x[1])
            else: lst.append(x)
        fl = F[sg]
        if sg == 0:
            head = []; cnt = 0
            while cnt < RA + 2:
                x = lst.pop(0); head.append(x)
                if isinstance(x, str) and x.startswith('v_mfma'): cnt += 1
            lst = head + interleave(lst, fl, None)
        else:
            lst = interleave(lst, fl, None)
        for x in lst:
            if isinstance(x, tuple) and x[0] == 'CHK':
                p(f"{name}_chk:")
                put(p, chk)
                p(f"s_cbranch_scc1 {name}_slow")
                p(f"{name}_go:")
            elif x == "s_nop 0": pass
            else: put(p, [x])
        if diag and sg == -1: stamp(p,4)
    if diag: stamp(p,5)
    p("s_lshl_b32 s3, s70, 12\ns_add_u32 s3, s3, %d" % (64*2048))
    for b in range(3):
        for r in range(16):
            p(f"v_accvgpr_read_b32 v{X+32*b+r}, a{GACC+32*b+r}\nv_accvgpr_read_b32 v{X+32*b+16+r}, a{GACC+32*b+16+r}")
        for r in range(16): p(f"v_mul_f32 v{X+32*b+r}, v{X+32*b+r}, v{X+32*b+16+r}")
        O = T + 8*b
        for r in range(0,16,2): p(f"v_cvt_pk_bf16_f32 v{O+r//2}, v{X+32*b+r}, v{X+32*b+r+1}")
        if b == 2: p(f"s_cmp_lt_u32 s62, 11\ns_cselect_b32 s63, 0, {BIG}\nv_add_u32 v{HDOFF}, s63, v{HDOFF}")
        for s in range(2):
            p(f"buffer_store_dwordx4 {vr(O+4*s)}, v{HDOFF}, s[56:59], s3 offen offset:{2048*s}")
        if b < 2: p("s_add_u32 s3, s3, 4096")
    if diag:
        stamp(p,6); p("s_waitcnt vmcnt(0)"); stamp(p,7)
        stamp_flush(p, 8, STAMP_OFF, name+"_st")
    p(f"{name}_done:\ns_endpgm")
    a.begin(name)
    for l in p.finalize(True): a(l)
    a(f"{name}_slow:\ns_sleep 2")
    for l in polld: a(l)
    a(f"s_waitcnt vmcnt(0)\ns_sub_u32 s78, s78, 1\ns_cmp_eq_u32 s78, 0\ns_cbranch_scc1 {name}_go\ns_branch {name}_chk")
    a.end(name, 256 + WF + 4*NWF, 102, 256)
    return 163840

def gen_k2(a, name, diag=False, D=6, codebytes=8192):
    p = Prog()
    LANE=1; HV=6; CV=8; DV=10; CA=12; DA=16
    HB=32
    WB=HB+8*D
    ACC=WB+32
    if diag: stamp(p,0)
    p(f"s_cmp_ge_u32 s2, 256\ns_cbranch_scc1 {name}_done")
    load_args(p)
    code_prefetch(p, codebytes, 2)
    p(f"v_lshrrev_b32 v5, 6, v0\nv_and_b32 v{LANE}, 63, v0\nv_readfirstlane_b32 s60, v5")
    p("s_and_b32 s61, s2, 7\ns_lshr_b32 s62, s2, 3\ns_lshl_b32 s61, s61, 2\ns_lshr_b32 s3, s62, 3\ns_add_u32 s61, s61, s3\ns_and_b32 s62, s62, 7")
    p(f"v_lshlrev_b32 v{HV}, 4, v{LANE}")
    p(f"v_lshrrev_b32 v2, 3, v{LANE}\nv_and_b32 v3, 7, v{LANE}\nv_lshrrev_b32 v5, 1, v2\nv_xor_b32 v5, v5, v3\nv_lshlrev_b32 v5, 4, v5\nv_lshl_add_u32 v{CV}, v2, 10, v5\nv_xor_b32 v{CV+1}, 64, v{CV}")
    p(f"v_add_u32 v{CV+1}, {8192-1024}, v{CV+1}")
    p(f"v_bfe_u32 v5, v2, 1, 1\nv_lshlrev_b32 v5, 2, v5\nv_xor_b32 v5, v5, v3\nv_lshlrev_b32 v5, 4, v5\nv_lshl_add_u32 v{DV}, v2, 10, v5\nv_add_u32 v{DV+1}, {8192-1024}, v{DV}")
    p(f"s_mul_i32 s65, s60, {40960}")
    p(f"v_and_b32 v2, 31, v{LANE}\nv_lshrrev_b32 v3, 5, v{LANE}\nv_bfe_u32 v5, v2, 1, 3\nv_xor_b32 v5, v5, v3\nv_lshlrev_b32 v5, 4, v5\nv_lshl_add_u32 v5, v2, 7, v5")
    for s in range(4): p(f"v_xor_b32 v7, {32*s}, v5\nv_add_u32 v{CA+s}, s65, v7")
    p(f"v_bfe_u32 v5, v{LANE}, 2, 2\nv_lshl_add_u32 v5, v3, 2, v5\nv_lshlrev_b32 v5, 7, v5")
    p(f"v_bfe_u32 v7, v{LANE}, 4, 1\nv_lshl_add_u32 v5, v7, 5, v5\nv_bfe_u32 v7, v{LANE}, 1, 1\nv_lshl_add_u32 v5, v7, 4, v5\nv_bfe_u32 v7, v{LANE}, 3, 1\nv_lshl_add_u32 v5, v7, 6, v5\nv_and_b32 v7, 1, v{LANE}\nv_lshl_add_u32 v5, v7, 3, v5")
    p(f"v_xor_b32 v7, 64, v5\nv_add_u32 v{DA}, s65, v5\nv_add_u32 v{DA+1}, s65, v7")
    p("s_waitcnt lgkmcnt(0)")
    p(f"s_mul_i32 s3, s61, {NKS*2048}\ns_add_u32 s36, s34, s3\ns_addc_u32 s37, s35, 0\ns_and_b32 s37, s37, 0xffff\ns_mov_b32 s38, {NKS*2048}\ns_mov_b32 s39, 0x20000")
    p("s_cmp_lt_u32 s60, 2\ns_cselect_b32 s40, s14, s16\ns_cselect_b32 s41, s15, s17\ns_and_b32 s41, s41, 0xffff\ns_mov_b32 s42, %d\ns_mov_b32 s43, 0x20000" % (512*1024))
    srdp(p, 44, 28, 1376*1024)
    p("s_lshl_b32 s66, s62, 16\ns_and_b32 s3, s60, 1\ns_lshl_b32 s3, s3, 9\ns_add_u32 s66, s66, s3")
    p(f"s_mul_i32 s67, s60, {11*32*1024}\ns_lshl_b32 s3, s62, 7\ns_add_u32 s67, s67, s3")
    p(f"s_lshl_b32 s68, s60, 15")
    p(f"s_mul_i32 s69, s60, {22*2048}\ns_add_u32 s69, s69, {64*2048}")
    units = [('C', u) for u in range(4)] + [('D', u) for u in range(6)]
    NSL = 5
    def dma(n):
        kind, u = units[n]; base = (n % NSL)*8192; o = []
        if kind == 'C':
            for t2 in range(4):
                o += L(f"s_add_u32 m0, s65, {base + t2*2048}\ns_add_u32 s3, s66, {u*128 + t2*16384}")
                o.append((f"buffer_load_dwordx4 v{CV}, s[40:43], s3 offen lds", f"w{n}"))
                o.append((f"buffer_load_dwordx4 v{CV+1}, s[40:43], s3 offen offset:1024 lds", f"w{n}"))
        else:
            for t2 in range(4 if u < 5 else 2):
                o += L(f"s_add_u32 m0, s65, {base + t2*2048}\ns_add_u32 s3, s67, {u*65536 + t2*16384}")
                o.append((f"buffer_load_dwordx4 v{DV}, s[44:47], s3 offen lds", f"w{n}"))
                o.append((f"buffer_load_dwordx4 v{DV+1}, s[44:47], s3 offen offset:1024 lds", f"w{n}"))
        return o
    NK = 38
    def hload(k):
        b = HB + 8*(k % D); o = []
        sreg, kk = ("s68", k) if k < 16 else ("s69", k-16)
        if kk % 2 == 0: o += L(f"s_add_u32 s70, {sreg}, {kk*2048}")
        o.append(f"buffer_load_dwordx4 {vr(b)}, v{HV}, s[36:39], s70 offen offset:{(kk&1)*2048}")
        o.append(f"buffer_load_dwordx4 {vr(b+4)}, v{HV}, s[36:39], s70 offen offset:{(kk&1)*2048+1024}")
        return o
    def wread(k):
        n = k//4; s = k % 4; base = (n % NSL)*8192; b = WB + 8*(k % 4); o = []
        if s == 0: o.append(('@', f"w{n}"))
        if units[n][0] == 'C':
            for nb in range(2): o.append(f"ds_read_b128 {vr(b+4*nb)}, v{CA+s} offset:{base + 4096*nb}")
        else:
            for nb in range(2):
                for q in range(2):
                    o.append(f"ds_read_b64_tr_b16 {vr(b+4*nb+2*q,2)}, v{DA+nb} offset:{base + 2048*s + 1024*q}")
        return o
    put(p, dma(0))
    for k in range(min(4,D)): put(p, hload(k))
    put(p, dma(1))
    for k in range(4, D): put(p, hload(k))
    for n in range(2, NSL-1): put(p, dma(n))
    put(p, wread(0)); put(p, wread(1))
    for k in range(NK):
        hb = HB + 8*(k % D); wb = WB + 8*(k % 4)
        ms = []
        for i in range(2):
            for j in range(2):
                c = ACC + 16*(2*i+j)
                ms.append(f"v_mfma_f32_32x32x16_bf16 {vr(c,16)}, {vr(wb+4*i)}, {vr(hb+4*j)}, {vr(c,16) if k else 0}")
        fl = []
        if k+2 < NK: fl += wread(k+2)
        put(p, interleave(ms, fl, None))
        if k + D < NK: put(p, hload(k+D))
        n = k//4 + NSL - 1
        if n < len(units):
            d = dma(n); q = len(d)//4
            put(p, d[(k%4)*q:(k%4+1)*q] if len(d) == 16 else (d if k%4 == 0 else []))
    if diag: stamp(p,1)
    PITCH = 272; TILE = 64*PITCH; NW = 4; NIT = 4
    p(f"v_lshrrev_b32 v4, 4, v{LANE}\ns_lshl_b32 s3, s60, 4\nv_add_u32 v4, s3, v4\nv_and_b32 v5, 15, v{LANE}")
    p("s_lshl_b32 s3, s61, 6\nv_add_u32 v6, s3, v4\ns_lshl_b32 s3, s62, 6\nv_lshl_add_u32 v7, v5, 2, s3")
    p("v_lshlrev_b32 v8, 9, v6\nv_add_u32 v8, v8, v7\nv_lshlrev_b32 v9, 1, v8\nv_lshlrev_b32 v10, 2, v8\nv_lshlrev_b32 v11, 3, v6\nv_lshlrev_b32 v12, 1, v7")
    p(f"s_add_u32 s72, s34, {ST_OFF}\ns_addc_u32 s73, s35, 0")
    XB = HB; SB = HB+8; DB = HB+16
    for it in range(NIT):
        if it: p(f"v_add_u32 v9, 4096, v9")
        p(f"global_load_dwordx2 {vr(XB+2*it,2)}, v9, s[4:5]")
        p(f"global_load_dwordx2 {vr(SB+2*it,2)}, v11, s[72:73] offset:{32*it}")
    p(f"global_load_dwordx2 {vr(DB,2)}, v12, s[20:21]")
    p(f"v_and_b32 v13, 31, v{LANE}\nv_bfe_u32 v14, v13, 2, 1\nv_lshlrev_b32 v14, 4, v14\nv_lshrrev_b32 v15, 3, v13\nv_lshl_add_u32 v14, v15, 2, v14\nv_and_b32 v15, 3, v13\nv_add_u32 v14, v14, v15")
    p(f"v_mul_u32_u24 v14, {PITCH}, v14\nv_lshrrev_b32 v15, 5, v{LANE}\nv_lshl_add_u32 v14, v15, 4, v14\nv_add_u32 v14, s65, v14")
    for i in range(2):
        for j in range(2):
            c = ACC + 16*(2*i+j)
            for g_ in range(4):
                p(f"ds_write_b128 v14, {vr(c+4*g_)} offset:{j*32*PITCH + i*128 + g_*32}")
    p(f"v_mul_u32_u24 v15, {PITCH}, v4\nv_lshl_add_u32 v15, v5, 4, v15\nv_add_u32 v13, {2*40960}, v15")
    p("s_waitcnt lgkmcnt(0)\ns_barrier")
    RB = ACC
    for it in range(NIT):
        for w in range(NW):
            r = RB + (it*NW + w)*4
            p(f"ds_read_b128 {vr(r)}, v{15 if w < 2 else 13} offset:{(w&1)*40960 + it*4*PITCH}")
    T = HB+20
    p(f"v_lshlrev_b32 v{T}, 16, v{DB}\nv_and_b32 v{T+1}, 0xffff0000, v{DB}\nv_lshlrev_b32 v{T+2}, 16, v{DB+1}\nv_and_b32 v{T+3}, 0xffff0000, v{DB+1}")
    for it in range(NIT):
        Xr = T+4; Y = T+8
        xb = XB+2*it; m = SB+2*it; rs = m+1
        p(f"v_lshlrev_b32 v{Xr}, 16, v{xb}\nv_and_b32 v{Xr+1}, 0xffff0000, v{xb}\nv_lshlrev_b32 v{Xr+2}, 16, v{xb+1}\nv_and_b32 v{Xr+3}, 0xffff0000, v{xb+1}")
        for e in range(4): p(f"v_sub_f32 v{Y+e}, v{Xr+e}, v{m}")
        def rnd():
            p(f"v_cvt_pk_bf16_f32 v{Y+4}, v{Y}, v{Y+1}\nv_cvt_pk_bf16_f32 v{Y+5}, v{Y+2}, v{Y+3}")
            p(f"v_lshlrev_b32 v{Y}, 16, v{Y+4}\nv_and_b32 v{Y+1}, 0xffff0000, v{Y+4}\nv_lshlrev_b32 v{Y+2}, 16, v{Y+5}\nv_and_b32 v{Y+3}, 0xffff0000, v{Y+5}")
        rnd()
        for e in range(4): p(f"v_mul_f32 v{Y+e}, v{Y+e}, v{rs}")
        rnd()
        for e in range(4): p(f"v_mul_f32 v{Y+e}, v{Y+e}, v{T+e}")
        rnd()
        for e in range(4): p(f"v_add_f32 v{Y+e}, v{Y+e}, v{Xr+e}")
        r0 = RB + it*NW*4
        for w in range(NW):
            for e in range(4):
                p(f"v_add_f32 v{r0+e}, v{r0+e}, v{Y+e if w == 0 else r0+4*w+e}")
        if it: p("v_add_u32 v10, 8192, v10")
        p(f"global_store_dwordx4 v10, {vr(r0)}, s[30:31]")
    if diag:
        stamp(p,2); p("s_waitcnt vmcnt(0)"); stamp(p,3)
        stamp_flush(p, 4, STAMP_OFF + (64<<10), name+"_st")
    p(f"{name}_done:\ns_endpgm")
    a.begin(name)
    for l in p.finalize(True): a(l)
    a.end(name, ACC+64, 102)
    return 163840

if __name__ == "__main__":
    import argparse
    ap = argparse.ArgumentParser(); ap.add_argument("out"); ap.add_argument("--diag", action="store_true")
    ap.add_argument("--xmap", type=int, default=1); ap.add_argument("--D", type=int, default=6); ap.add_argument("--empty", type=int, default=0); ap.add_argument("--touch", action="store_true")
    args = ap.parse_args()
    a = Asm()
    l1 = gen_k1(a, "p1_kernel", args.diag, args.xmap, touch=args.touch); a.add_launch("p1_kernel", 256, 256, l1)
    l2 = gen_k2(a, "p2_kernel", args.diag, args.D); a.add_launch("p2_kernel", 256, 256, l2)
    if args.empty:
        a.begin("e_kernel"); a("s_endpgm"); a.end("e_kernel", 8, 16)
        for k in range(args.empty): a.add_launch("e_kernel", 256, 256, 0)
    a(".fill 8192, 4, 0xbf800000")
    open(args.out, "w").write(a.text("generated by work/gen.py"))
```

```python
import sys; sys.path.insert(0,"work")
from g import *
from sched import *
from gen import vr, ar, srdp, put, L, cmul, csq, load_args, interleave, LOG2E, INV2PI, BIG, NKS
ST_OFF   = 10<<20
AGG_OFF  = (10<<20) + (64<<10)
EPOCH_OFF = (10<<20) + (256<<10)
FLG_OFF  = (10<<20) + (320<<10)
STAMP_OFF = 16<<20
WS_USED = 11<<20
SLOT = 24576
L_SCR = 147456
SPIN = 200000

def stamp(p, slot):
    p(f"s_memrealtime s[100:101]\ns_waitcnt lgkmcnt(0)\nv_writelane_b32 v95, s100, {slot}")
def stamp_flush(p, off):
    p("s_waitcnt vmcnt(0) lgkmcnt(0)")
    p(f"s_lshl_b32 s3, s2, 6\ns_add_u32 s3, s3, {off}\nv_lshl_add_u32 v2, v0, 2, s3\nv_cmp_gt_u32 vcc, 16, v0\ns_and_saveexec_b64 s[78:79], vcc\ns_cbranch_execz L_stf")
    p("global_store_dword v2, v95, s[34:35]\nL_stf:\ns_mov_b64 exec, s[78:79]")

def gen(a, name, diag=False, xmap=1, codebytes=32768, opt=None):
    opt = opt or {}
    p = Prog()
    LANE=1
    XV=8; RO=12; RX=16; RB=20; SUM=24; CSB=28
    TMP=8
    BV=36; GV=38; GO=41; G1=45
    AR,AI,A16R,A16I,PWR,PWI,GR,GI,W0R,W0I,W1R,W1I = range(49,61)
    HDOFF=61; AGST=62; AGLD=63; SEGW=64; SEGR=65; TRW=66; TRR=67; POR,POI=68,69; RS=70; NM=71
    SEL=72; CSG=76; FLST=92; FLLD=93; CSW=94
    SRE=96; SIM=112; GACC=128; WF=224; NWF=8
    DG=GACC; PT=GACC+16
    XO=0; XX=128
    slot = lambda t: (t % 6)*SLOT
    def st(k):
        if diag: stamp(p, k)
    p(f"s_cmp_ge_u32 s2, 256\ns_cbranch_scc1 {name}_done")
    load_args(p)
    if diag: p("v_mov_b32 v95, 0")
    st(0)
    p("s_getpc_b64 s[76:77]")
    p(f"v_lshrrev_b32 v5, 6, v0\nv_and_b32 v{LANE}, 63, v0\ns_and_b32 s3, s2, 7\nv_readfirstlane_b32 s60, v5\ns_lshr_b32 s63, s2, 3")
    nl = codebytes//128//32
    p(f"s_mul_i32 s64, s63, {nl*128}\nv_min_u32 v2, {nl-1}, v0\nv_lshl_add_u32 v2, v2, 7, s64\nglobal_load_dword v{PT+40}, v2, s[76:77]")
    if xmap == 1:
        p("s_and_b32 s61, s3, 1\ns_lshl_b32 s61, s61, 3\ns_and_b32 s64, s63, 7\ns_add_u32 s61, s61, s64")
        p("s_lshr_b32 s62, s3, 1\ns_lshl_b32 s62, s62, 2\ns_lshr_b32 s64, s63, 3\ns_add_u32 s62, s62, s64")
    else:
        p("s_lshl_b32 s61, s3, 1\ns_lshr_b32 s64, s63, 4\ns_add_u32 s61, s61, s64\ns_and_b32 s62, s63, 15")
    p("s_lshl_b32 s80, s3, 2\ns_lshr_b32 s64, s63, 3\ns_add_u32 s80, s80, s64\ns_and_b32 s81, s63, 7")
    p(f"v_lshrrev_b32 v2, 3, v{LANE}\nv_and_b32 v3, 7, v{LANE}\nv_lshrrev_b32 v5, 1, v2\nv_xor_b32 v5, v5, v3\nv_lshlrev_b32 v5, 4, v5")
    p(f"v_lshl_add_u32 v{BV}, v2, 10, v5\nv_xor_b32 v{BV+1}, 64, v{BV}\nv_add_u32 v{BV+1}, 7168, v{BV+1}")
    p(f"v_lshrrev_b32 v6, 2, v2\nv_and_b32 v7, 3, v2\nv_lshl_add_u32 v6, v6, 4, v7\nv_lshl_add_u32 v{XV}, v6, 10, v5")
    p(f"v_xor_b32 v6, 64, v{XV}\nv_add_u32 v{XV+1}, 3072, v6\nv_add_u32 v{XV+2}, 6144, v{XV}\nv_add_u32 v{XV+3}, 9216, v6")
    p("s_lshl_b32 s64, s61, 7\ns_lshl_b32 s65, s60, 5\ns_add_u32 s64, s64, s65\ns_lshl_b32 s64, s64, 10")
    p("s_lshl_b32 s65, s60, 12")
    p("s_lshl_b32 s67, s62, 5\ns_and_b32 s68, s60, 1\ns_lshl_b32 s68, s68, 4\ns_add_u32 s67, s67, s68\ns_lshl_b32 s67, s67, 10")
    p("s_lshl_b32 s68, s60, 11\ns_add_u32 s68, s68, 16384")
    P0 = PT+24
    p(f"v_and_b32 v{P0}, 31, v0\ns_lshl_b32 s70, s62, 5\nv_add_u32 v{P0+1}, s70, v{P0}\nv_lshlrev_b32 v{P0+2}, 1, v{P0+1}")
    p("s_waitcnt lgkmcnt(0)")
    p(f"global_load_ushort v{P0+3}, v{P0+2}, s[6:7]\nglobal_load_ushort v{P0+4}, v{P0+2}, s[8:9]\nglobal_load_ushort v{P0+5}, v{P0+2}, s[18:19]")
    srdp(p, 36, 4, 2048*1024)
    p("s_cmp_lt_u32 s60, 2\ns_cselect_b32 s40, s10, s12\ns_cselect_b32 s41, s11, s13\ns_and_b32 s41, s41, 0xffff\ns_mov_b32 s42, %d\ns_mov_b32 s43, 0x20000" % (512*1024))
    def dmaS(t):
        o = L(f"s_add_u32 m0, s65, {slot(t)}\ns_add_u32 s66, s64, {128*t}")
        for c in range(4): o.append((f"buffer_load_dwordx4 v{XV+c}, s[36:39], s66 offen offset:{c*1024} lds", f"st{t}"))
        o += L(f"s_add_u32 m0, s68, {slot(t)}\ns_add_u32 s66, s67, {128*t}")
        for c in range(2): o.append((f"buffer_load_dwordx4 v{BV+c}, s[40:43], s66 offen offset:{c*1024} lds", f"st{t}"))
        return o
    def dmaG(tt):
        t = 8+tt
        o = L(f"s_add_u32 s66, s74, {tt*64*2752}")
        for m, sr in enumerate((48, 52)):
            o += L(f"s_add_u32 m0, s75, {slot(t) + m*3072}")
            for pp in range(3):
                o.append((f"buffer_load_dwordx4 v{GV+pp}, s[{sr}:{sr+3}], s66 offen offset:{pp*1024} lds", f"st{t}"))
        return o
    def dma(t): return dmaS(t) if t < 8 else dmaG(t-8)
    put(p, dma(0))
    p(f"s_add_u32 s72, s34, {EPOCH_OFF}\ns_addc_u32 s73, s35, 0\ns_load_dword s71, s[72:73], 0")
    p("s_cmp_lt_u32 s2, 128\ns_cselect_b32 s44, s14, s16\ns_cselect_b32 s45, s15, s17")
    for w, b in ((2, 28), (1, 26), (0, 24)):
        p(f"s_cmp_eq_u32 s60, {w}\ns_cselect_b32 s44, s{b}, s44\ns_cselect_b32 s45, s{b+1}, s45")
    p(f"s_and_b32 s45, s45, 0xffff\ns_mov_b32 s47, 0x20000\ns_mov_b32 s46, {1376*1024}\ns_movk_i32 s63, 255\ns_cmp_eq_u32 s60, 3\ns_cselect_b32 s46, {512*1024}, s46\ns_cselect_b32 s3, 32, 43\ns_cselect_b32 s63, 127, s63\ns_and_b32 s63, s63, s2\ns_mul_i32 s63, s63, s3")
    p(f"v_add_u32 v5, s63, v{LANE}\nv_lshlrev_b32 v5, 7, v5\nv_mov_b32 v6, {BIG}\nv_cmp_gt_u32 vcc, s3, v{LANE}\nv_cndmask_b32 v5, v6, v5, vcc")
    p(f"buffer_load_dword v{PT+41}, v5, s[44:47], 0 offen")
    put(p, dma(1))
    q = Prog()
    srdp(q, 48, 24, 512*2752); srdp(q, 52, 26, 512*2752); srdp(q, 56, 34, WS_USED)
    HF = PT+42
    q(f"v_lshrrev_b32 v{HF}, 5, v{LANE}")
    q(f"v_bfe_u32 v5, v{P0}, 1, 3\nv_xor_b32 v5, v5, v{HF}\nv_lshlrev_b32 v5, 4, v5\nv_lshl_add_u32 v5, v{P0}, 7, v5\ns_lshl_b32 s3, s60, 5\nv_xor_b32 v5, s3, v5\ns_xor_b32 s63, s65, 4096")
    for c in range(4):
        q(f"v_xor_b32 v6, {32*c}, v5\nv_add_u32 v{RO+c}, s65, v6\nv_add_u32 v{RX+c}, s63, v6\nv_add_u32 v{RB+c}, 16384, v6")
    q(f"v_bfe_u32 v5, v{LANE}, 4, 1\nv_bfe_u32 v6, v{LANE}, 2, 1\nv_cmp_eq_u32 vcc, v5, v6\nv_mov_b32 v5, 0x3f803f80\nv_cndmask_b32 v{SEL}, 0, v5, vcc")
    for e in range(1,4): q(f"v_mov_b32 v{SEL+e}, v{SEL}")
    for pp in range(3):
        q(f"v_add_u32 v6, {64*pp}, v{LANE}\nv_mul_u32_u24 v7, {(65536+11)//12}, v6\nv_lshrrev_b32 v7, 16, v7\nv_mul_u32_u24 v5, 12, v7\nv_sub_u32 v6, v6, v5")
        q(f"v_mul_u32_u24 v7, 2752, v7\nv_lshl_add_u32 v{GV+pp}, v6, 4, v7")
        if pp: q(f"v_subrev_u32 v{GV+pp}, {1024*pp}, v{GV+pp}")
        q(f"s_cmp_lt_u32 s62, 11\ns_cselect_b32 s3, 0, 64\ns_cselect_b32 s63, 0, {BIG}")
        q(f"v_lshrrev_b32 v6, 2, v6\nv_cmp_eq_u32 vcc, 2, v6\nv_subrev_u32 v7, s3, v{GV+pp}\nv_cndmask_b32 v{GV+pp}, v{GV+pp}, v7, vcc")
        q(f"v_cmp_eq_u32 vcc, 1, v6\nv_add_u32 v7, s63, v{GV+pp}\nv_cndmask_b32 v{GV+pp}, v{GV+pp}, v7, vcc")
    q(f"v_bfe_u32 v5, v{LANE}, 2, 2\nv_lshl_add_u32 v5, v{HF}, 3, v5\nv_mul_u32_u24 v7, 192, v5")
    q(f"v_bfe_u32 v5, v{LANE}, 4, 1\nv_lshl_add_u32 v7, v5, 5, v7\nv_and_b32 v5, 3, v{LANE}\nv_lshl_add_u32 v7, v5, 3, v7")
    q("s_and_b32 s69, s60, 1\ns_lshl_b32 s69, s69, 7")
    for c in range(4):
        q(f"s_xor_b32 s3, s60, {c}\ns_mul_i32 s3, s3, 6144\ns_add_u32 s63, s3, {2*SLOT+64}\nv_add_u32 v{G1+c}, s63, v7\ns_add_u32 s3, s3, s69\ns_add_u32 s3, s3, {2*SLOT}\nv_add_u32 v{GO+c}, s3, v7")
    q("s_mul_i32 s70, s62, 3\ns_lshl_b32 s74, s62, 1\ns_add_u32 s74, s74, 11\ns_cmp_lt_u32 s62, 11\ns_cselect_b32 s70, s70, s74")
    q(f"s_lshl_b32 s74, s70, 6\ns_mul_i32 s75, s60, {16*2752}\ns_add_u32 s74, s74, s75\ns_mul_i32 s75, s60, 6144")
    q(f"s_lshl_b32 s82, s61, 1\ns_lshr_b32 s63, s60, 1\ns_add_u32 s82, s82, s63\ns_mul_i32 s3, s82, {NKS*2048}\ns_and_b32 s63, s60, 1\ns_lshl_b32 s63, s63, 10\ns_add_u32 s3, s3, s63")
    q(f"v_lshlrev_b32 v{HDOFF}, 4, v{LANE}\nv_add_u32 v{HDOFF}, s3, v{HDOFF}")
    q(f"s_lshl_b32 s3, s82, 7\ns_lshl_b32 s63, s62, 3\ns_add_u32 s3, s3, s63\ns_and_b32 s63, s60, 1\ns_lshl_b32 s63, s63, 2\ns_add_u32 s3, s3, s63\ns_add_u32 s3, s3, {FLG_OFF}")
    q(f"v_mov_b32 v5, s3\nv_mov_b32 v6, {BIG}\nv_cmp_eq_u32 vcc, 0, v{LANE}\nv_cndmask_b32 v{FLST}, v6, v5, vcc")
    q(f"s_lshl_b32 s3, s80, 7\ns_add_u32 s3, s3, {FLG_OFF}\nv_lshl_add_u32 v{FLLD}, v{P0}, 2, s3")
    q(f"s_lshl_b32 s3, s61, 13\ns_add_u32 s3, s3, {AGG_OFF}\nv_lshl_add_u32 v5, v{P0+1}, 4, s3\nv_cmp_gt_u32 vcc, 32, v0\nv_cndmask_b32 v{AGST}, v6, v5, vcc")
    q(f"s_lshl_b32 s3, s60, 15\ns_add_u32 s3, s3, {AGG_OFF}\nv_lshl_add_u32 v5, v{P0+1}, 4, s3\nv_lshl_add_u32 v{AGLD}, v{HF}, 13, v5")
    q(f"v_lshlrev_b32 v{SEGW}, 3, v0\nv_add_u32 v{SEGW}, {L_SCR}, v{SEGW}\nv_lshlrev_b32 v{SEGR}, 3, v{P0}\nv_add_u32 v{SEGR}, {L_SCR}, v{SEGR}")
    q(f"s_add_u32 s3, s65, {L_SCR}\nv_lshlrev_b32 v5, 6, v{P0}\nv_lshl_add_u32 v5, v{HF}, 5, v5\nv_add_u32 v{TRW}, s3, v5")
    q(f"v_bfe_u32 v5, v{LANE}, 2, 2\nv_lshl_add_u32 v5, v{HF}, 3, v5\nv_lshlrev_b32 v5, 6, v5\nv_and_b32 v6, 1, v{LANE}\nv_lshl_add_u32 v5, v6, 5, v5")
    q(f"v_bfe_u32 v6, v{LANE}, 4, 1\nv_lshl_add_u32 v5, v6, 4, v5\nv_bfe_u32 v6, v{LANE}, 1, 1\nv_lshl_add_u32 v5, v6, 3, v5\nv_add_u32 v{TRR}, s3, v5")
    q(f"s_lshl_b32 s3, s60, 2\ns_add_u32 s3, s3, {L_SCR}\nv_lshl_add_u32 v{CSW}, v{LANE}, 4, s3")
    lr, li, dt = P0+3, P0+4, P0+5
    t = P0+6
    q(f"v_lshlrev_b32 v{lr}, 16, v{lr}\nv_lshlrev_b32 v{li}, 16, v{li}\nv_lshlrev_b32 v{dt}, 16, v{dt}")
    q(f"v_mul_f32 v{dt}, {LOG2E}, v{dt}\nv_exp_f32 v{dt}, v{dt}\nv_cvt_pk_bf16_f32 v{dt}, v{dt}, v{dt}\nv_and_b32 v{dt}, 0xffff0000, v{dt}")
    q(f"v_mul_f32 v{t}, v{dt}, v{lr}\nv_mul_f32 v{t+1}, v{dt}, v{li}\nv_mul_f32 v{t}, {LOG2E}, v{t}\nv_exp_f32 v{t}, v{t}")
    q(f"v_mul_f32 v{t+1}, {INV2PI}, v{t+1}\nv_rndne_f32 v{t+2}, v{t+1}\nv_sub_f32 v{t+1}, v{t+1}, v{t+2}\nv_cos_f32 v{t+2}, v{t+1}\nv_sin_f32 v{t+3}, v{t+1}")
    q(f"v_mul_f32 v{AR}, v{t}, v{t+2}\nv_mul_f32 v{AI}, v{t}, v{t+3}")
    q(f"v_add_f32 v{t}, -1.0, v{AR}\nv_mul_f32 v{t+1}, v{lr}, v{lr}\nv_fmac_f32 v{t+1}, v{li}, v{li}\nv_rcp_f32 v{t+1}, v{t+1}")
    q(f"v_mul_f32 v{t+2}, v{t}, v{lr}\nv_fmac_f32 v{t+2}, v{AI}, v{li}\nv_mul_f32 v{t+3}, v{AI}, v{lr}\nv_fma_f32 v{t+3}, -v{t}, v{li}, v{t+3}")
    q(f"v_add_f32 v{t+1}, v{t+1}, v{t+1}\nv_mul_f32 v{GR}, v{t+2}, v{t+1}\nv_mul_f32 v{GI}, v{t+3}, v{t+1}")
    u = PT
    put(q, csq(u, u+1, AR, AI, t)); put(q, csq(u+2, u+3, u, u+1, t)); put(q, csq(u, u+1, u+2, u+3, t)); put(q, csq(A16R, A16I, u, u+1, t))
    put(q, csq(u, u+1, A16R, A16I, t)); put(q, csq(u+2, u+3, u, u+1, t)); put(q, csq(u+4, u+5, u+2, u+3, t))
    put(q, csq(u+6, u+7, u+4, u+5, t)); put(q, csq(u+8, u+9, u+6, u+7, t)); put(q, csq(u+10, u+11, u+8, u+9, t))
    def selpow(dr, di, nreg, facs, z):
        for b, (fr, fi) in enumerate(facs):
            q(f"v_and_b32 v{z}, {1<<b}, v{nreg}\nv_cmp_ne_u32 vcc, 0, v{z}")
            tr_, ti_ = (dr, di) if b == 0 else (z+1, z+2)
            q(f"v_cndmask_b32 v{tr_}, 1.0, v{fr}, vcc\nv_cndmask_b32 v{ti_}, 0, v{fi}, vcc")
            if b: put(q, cmul(dr, di, dr, di, z+1, z+2, t))
    q(f"v_lshrrev_b32 v5, 5, v0")
    selpow(PWR, PWI, 5, [(A16R,A16I),(u,u+1),(u+2,u+3)], u+12)
    q(f"s_lshl_b32 s3, s60, 2\ns_sub_u32 s3, s61, s3\ns_sub_u32 s3, s3, 1\nv_sub_u32 v5, s3, v{HF}\nv_subrev_u32 v6, 2, v5")
    Af = [(u+4,u+5),(u+6,u+7),(u+8,u+9),(u+10,u+11)]
    selpow(W0R, W0I, 5, Af, u+12); selpow(W1R, W1I, 6, Af, u+12)
    q("v_cmp_le_i32 s[96:97], 0, v5\nv_cmp_le_i32 s[98:99], 0, v6")
    q(f"s_waitcnt lgkmcnt(0)\ns_mul_i32 s71, s71, 0x9E3779B1\ns_add_u32 s71, s71, 0x7F4A7C15\ns_mov_b32 s78, {SPIN}")
    dl = []
    for tt in range(2, 6):
        d = dma(tt); cur = []
        for x in d:
            cur.append(x)
            if isinstance(x, tuple): dl.append(cur); cur = []
    items = q.items; every = max(1, len(items)//(len(dl)+1)); k = 0; cnt = 0
    for idx, it in enumerate(items):
        cnt += 1
        if cnt >= every and k < len(dl) and it.kind == 'valu' and not any(x.mn in ('s_cselect_b32','s_addc_u32') for x in items[idx:idx+1]) :
            ok = True
            for y in items[idx:]:
                if y.mn.startswith('s_cmp') or y.mn in ('s_add_u32','s_lshl_b32','s_and_b32','s_xor_b32','s_sub_u32','s_lshr_b32'): break
                if y.mn in ('s_cselect_b32','s_addc_u32'): ok = False; break
            if ok:
                put(p, dl[k]); k += 1; cnt = 0
        p.add(it)
    while k < len(dl): put(p, dl[k]); k += 1
    st(1)
    def sbase(t): return slot(t) % (2*SLOT)
    def bump(t):
        o = []
        if t % 2 == 0 and t not in (0, 8):
            d = 2*SLOT if (t % 6) else -4*SLOT
            regs = list(range(RO, RO+12)) if t < 8 else list(range(GO, GO+8))
            for r in regs: o.append(f"v_add_u32 v{r}, {d & 0xffffffff:#x}, v{r}")
        return o
    fcount = [0]
    fmap = {}
    def newf(key):
        d = WF + 4*(fcount[0] % NWF); fcount[0] += 1; fmap[key] = d; return d
    def reads(t, c):
        o = []
        if t < 8:
            n = 4*t+c
            o.append(f"ds_read_b128 {ar(XO+4*n)}, v{RO+c} offset:{sbase(t)}")
            for m in range(2): o.append(f"ds_read_b128 {vr(newf((t,c,m)))}, v{RB+c} offset:{sbase(t)+4096*m}")
            o.append(f"ds_read_b128 {ar(XX+4*n)}, v{RX+c} offset:{sbase(t)}")
        else:
            for kind, areg in (('o', GO), ('1', G1)):
                for m in range(2):
                    d = newf((t,c,kind,m)); off = sbase(t) + m*3072
                    o.append([f"ds_read_b64_tr_b16 {vr(d,2)}, v{areg+c} offset:{off}", f"ds_read_b64_tr_b16 {vr(d+2,2)}, v{areg+c} offset:{off+768}"])
        return o
    def M32(acc, A, B, first): return f"v_mfma_f32_32x32x16_bf16 {vr(acc,16)}, {A}, {B}, {0 if first else vr(acc,16)}"
    def M16(acc, A, B, first): return f"v_mfma_f32_16x16x32_bf16 {vr(acc)}, {A}, {B}, {0 if first else vr(acc)}"
    def mfmas(t, c):
        o = []
        if t < 8:
            n = 4*t+c; x = ar(XO+4*n); f = n == 0
            o.append(M32(DG, x, x, f)); o.append(M16(SUM, vr(SEL), x, f))
            for m in range(2):
                d = vr(fmap[(t,c,m)])
                o.append(M32(SRE if m == 0 else SIM, x, d, f))
                if c == 0: o.append(M16(CSB+4*m, vr(SEL), d, t == 0))
        else:
            n = 4*(t-8)+c; f = n == 0
            for m in range(2):
                d = vr(fmap[(t,c,'o',m)])
                o.append(M32(GACC+16*m, d, ar(XO+4*n), f)); o.append(M32(GACC+32+16*m, d, ar(XX+4*n), f))
                if c < 2: o.append(M16(CSG+4*m, vr(SEL), d, f))
            for m in range(2):
                d = vr(fmap[(t,c,'1',m)])
                o.append(M32(GACC+64+16*m, d, ar(XO+4*n), f))
                if c == 0: o.append(M16(CSG+8+4*m, vr(SEL), d, f))
        return o
    F = {t: [] for t in range(0, 17)}
    def step(dr, di, hr, hi, ur, ui, cr, ci):
        return L(f"v_fma_f32 v{dr}, v{cr}, v{hr}, v{ur}\nv_fma_f32 v{di}, v{cr}, v{hi}, v{ui}\nv_fma_f32 v{dr}, -v{ci}, v{hi}, v{dr}\nv_fma_f32 v{di}, v{ci}, v{hr}, v{di}")
    def cs_pack(src, tbl, tA, tag):
        return L(f"""v_cvt_pk_bf16_f32 v{tA}, v{src}, v{src}
        v_and_b32 v{tA}, 0xffff0000, v{tA}
        v_sub_f32 v{tA+1}, v{src}, v{tA}
        v_cvt_pk_bf16_f32 v{tA+2}, v{tA}, v{tA+1}
        v_and_b32 v{tA}, 0xffff0000, v{tA+2}
        v_sub_f32 v{tA+1}, v{tA+1}, v{tA}
        v_cvt_pk_bf16_f32 v{tA+1}, v{tA+1}, 0
        v_cndmask_b32 v{tA+2}, v{tA+2}, v{tA+1}, vcc""") + [(f"ds_write_b32 v{CSW}, v{tA+2} offset:{tbl}", tag)]
    T1 = 2
    post = []
    n = 16
    for bit in (0,1,3,4):
        post += L(f"v_and_b32 v5, {1<<bit}, v{LANE}\nv_cmp_ne_u32 vcc, 0, v5")
        n //= 2
        for k in range(n): post.append(f"v_cndmask_b32 v{DG+k}, v{DG+2*k}, v{DG+2*k+1}, vcc")
    post += L(f"v_bfe_u32 v5, v{LANE}, 2, 1\nv_lshrrev_b32 v6, 5, v{LANE}\nv_cmp_eq_u32 vcc, v5, v6\nv_cndmask_b32 v{XV}, 0, v{DG}, vcc")
    f = L(f"v_mov_b32 v{XV+1}, v{XV}\nv_permlane32_swap_b32 v{XV}, v{XV+1}\nv_add_f32 v{XV}, v{XV}, v{XV+1}")
    f += L(f"v_mul_f32 v5, 0x3b000000, v{SUM}\nv_mul_f32 v6, 0x3b000000, v{XV}\nv_fma_f32 v6, -v5, v5, v6\nv_max_f32 v6, 0, v6")
    f += L(f"v_cvt_pk_bf16_f32 v5, v5, v6\nv_and_b32 v6, 0xffff0000, v5\nv_lshlrev_b32 v{XV}, 16, v5")
    f += L(f"v_add_f32 v6, 0x3727c5ac, v6\nv_cvt_pk_bf16_f32 v6, v6, v6\nv_and_b32 v6, 0xffff0000, v6\nv_sqrt_f32 v6, v6\nv_cvt_pk_bf16_f32 v6, v6, v6\nv_and_b32 v6, 0xffff0000, v6")
    f += L(f"v_rcp_f32 v{RS}, v6\nv_cvt_pk_bf16_f32 v{NM}, -v{XV}, -v{XV}\nv_mov_b32 v{XV+1}, v{RS}")
    f += L(f"v_bfe_u32 v5, v{LANE}, 2, 1\nv_lshlrev_b32 v5, 4, v5\nv_bfe_u32 v6, v{LANE}, 3, 2\nv_lshl_add_u32 v5, v6, 2, v5\nv_and_b32 v6, 3, v{LANE}\nv_add_u32 v5, v5, v6")
    f += L(f"s_lshl_b32 s3, s60, 7\ns_add_u32 s3, s3, {L_SCR+6144}\nv_lshl_add_u32 v6, v5, 2, s3")
    f.append((f"ds_write_b32 v6, v{RS}", "x1"))
    f += L(f"s_lshr_b32 s3, s64, 7\ns_add_u32 s3, s3, {ST_OFF}\ns_cmp_eq_u32 s62, 0\ns_cselect_b32 s3, s3, {BIG}\nv_lshl_add_u32 v5, v5, 3, s3")
    f.append(f"buffer_store_dwordx2 {vr(XV,2)}, v5, s[56:59], 0 offen sc1")
    f += L(f"s_lshl_b32 s3, s60, 8\nv_add_u32 v6, s3, v{SEGR}")
    f.append((f"ds_write_b64 v6, {vr(RS,2)} offset:6656", "x1"))
    f += L(f"v_cmp_le_u32 vcc, 32, v{LANE}")
    f += cs_pack(CSB, 4096, 2, "x1") + cs_pack(CSB+4, 5120, 5, "x1")
    f += [('@', "x1")]
    F[8] = f
    RT = TMP; NMF = TMP+16; CF = TMP+20; H = TMP+24
    f = L(f"v_lshlrev_b32 v5, 4, v{LANE}\nv_add_u32 v5, {L_SCR}, v5")
    f += [f"ds_read_b128 {vr(CF)}, v5 offset:4096", f"ds_read_b128 {vr(H)}, v5 offset:5120"]
    f += L(f"s_lshl_b32 s3, s60, 7\ns_add_u32 s3, s3, {L_SCR+6144}\nv_lshrrev_b32 v6, 5, v{LANE}\nv_lshl_add_u32 v6, v6, 6, s3")
    for k in range(4): f.append(f"ds_read_b128 {vr(RT+4*k)}, v6 offset:{16*k}")
    for k in range(4): f.append(f"v_mov_b32 v{NMF+k}, v{NM}")
    f += ["#", "#", "#", "#"]
    f += ["X" + M32(SRE, vr(NMF), vr(CF), False), "X" + M32(SIM, vr(NMF), vr(H), False)]
    f += ["#"]*12
    for r in range(16): f += L(f"v_mul_f32 v{SRE+r}, v{RT+r}, v{SRE+r}\nv_mul_f32 v{SIM+r}, v{RT+r}, v{SIM+r}")
    cur = (SRE, SIM)
    for r in range(1, 16):
        d = (H + 2*(r&1), H + 2*(r&1) + 1)
        f += step(d[0], d[1], cur[0], cur[1], SRE+r, SIM+r, AR, AI); cur = d
    f.append((f"ds_write_b64 v{SEGW}, {vr(cur[0],2)}", "sw1"))
    f += ["#"]*4 + [('@', "sw1")]
    F[9] = f
    E = TMP
    f = []
    for sg in range(8): f.append(f"ds_read_b64 {vr(E+2*sg,2)}, v{SEGR} offset:{256*sg}")
    f += L(f"v_lshrrev_b32 v2, 5, v0\nv_mov_b32 v{POR}, 0\nv_mov_b32 v{POI}, 0")
    cur = (E, E+1)
    for sg in range(1, 8):
        f += L(f"v_cmp_eq_u32 vcc, {sg}, v2")
        d = (E+2*sg, E+2*sg+1)
        s_ = step(d[0], d[1], cur[0], cur[1], d[0], d[1], A16R, A16I)
        f += s_[:2] + L(f"v_cndmask_b32 v{POR}, v{POR}, v{cur[0]}, vcc\nv_cndmask_b32 v{POI}, v{POI}, v{cur[1]}, vcc") + s_[2:]
        cur = d
    f += L(f"v_mov_b32 v{H}, v{cur[0]}\nv_mov_b32 v{H+1}, s71\nv_mov_b32 v{H+2}, v{cur[1]}\nv_mov_b32 v{H+3}, s71")
    f.append(f"buffer_store_dwordx4 {vr(H)}, v{AGST}, s[56:59], 0 offen sc1")
    f += ["#"]*30
    F[10] = f
    PL = E
    polld = [f"buffer_load_dwordx4 {vr(PL)}, v{AGLD}, s[56:59], 0 offen sc1", f"buffer_load_dwordx4 {vr(PL+4)}, v{AGLD}, s[56:59], s83 offen sc1"]
    chk = L(f"""v_cmp_ne_u32 vcc, s71, v{PL+1}
    v_cmp_ne_u32 s[100:101], s71, v{PL+3}
    s_or_b64 vcc, vcc, s[100:101]
    s_and_b64 s[94:95], vcc, s[96:97]
    v_cmp_ne_u32 vcc, s71, v{PL+5}
    v_cmp_ne_u32 s[100:101], s71, v{PL+7}
    s_or_b64 vcc, vcc, s[100:101]
    s_and_b64 vcc, vcc, s[98:99]
    s_or_b64 s[94:95], s[94:95], vcc""")
    DV = TMP+16; DA = TMP+18; CA = TMP+20
    f = ["s_mov_b32 s83, 16384"]
    f += L(f"v_lshrrev_b32 v2, 3, v{LANE}\nv_and_b32 v3, 7, v{LANE}\nv_bfe_u32 v5, v2, 1, 1\nv_lshlrev_b32 v5, 2, v5\nv_xor_b32 v5, v5, v3\nv_lshlrev_b32 v5, 4, v5\nv_lshl_add_u32 v{DV}, v2, 10, v5\nv_add_u32 v{DV+1}, 7168, v{DV}")
    f += L(f"v_and_b32 v2, 31, v{LANE}\nv_lshrrev_b32 v3, 5, v{LANE}\nv_bfe_u32 v5, v2, 1, 3\nv_xor_b32 v5, v5, v3\nv_lshlrev_b32 v5, 4, v5\nv_lshl_add_u32 v5, v2, 7, v5")
    for s in range(4): f += L(f"v_xor_b32 v7, {32*s}, v5\nv_add_u32 v{CA+s}, s65, v7")
    f += L(f"v_bfe_u32 v5, v{LANE}, 2, 2\nv_lshl_add_u32 v5, v3, 2, v5\nv_lshlrev_b32 v5, 7, v5")
    f += L(f"v_bfe_u32 v7, v{LANE}, 4, 1\nv_lshl_add_u32 v5, v7, 5, v5\nv_bfe_u32 v7, v{LANE}, 1, 1\nv_lshl_add_u32 v5, v7, 4, v5\nv_bfe_u32 v7, v{LANE}, 3, 1\nv_lshl_add_u32 v5, v7, 6, v5\nv_and_b32 v7, 1, v{LANE}\nv_lshl_add_u32 v5, v7, 3, v5")
    f += L(f"v_xor_b32 v7, 64, v5\nv_add_u32 v{DA}, s65, v5\nv_add_u32 v{DA+1}, s65, v7")
    f += ["&" + x for x in L(f"s_mul_i32 s3, s80, {NKS*2048}\ns_add_u32 s36, s34, s3\ns_addc_u32 s37, s35, 0\ns_and_b32 s37, s37, 0xffff\ns_mov_b32 s38, {NKS*2048}\ns_mov_b32 s39, 0x20000")]
    f += ["&" + x for x in L("s_cmp_lt_u32 s60, 2\ns_cselect_b32 s40, s14, s16\ns_cselect_b32 s41, s15, s17\ns_and_b32 s41, s41, 0xffff\ns_mov_b32 s42, %d\ns_mov_b32 s43, 0x20000" % (512*1024))]
    f += L(f"s_mov_b32 s44, s28\ns_and_b32 s45, s29, 0xffff\ns_mov_b32 s46, {1376*1024}\ns_mov_b32 s47, 0x20000")
    f += L("s_lshl_b32 s84, s81, 16\ns_and_b32 s3, s60, 1\ns_lshl_b32 s3, s3, 9\ns_add_u32 s84, s84, s3")
    f += L(f"s_mul_i32 s85, s60, {11*32*1024}\ns_lshl_b32 s3, s81, 7\ns_add_u32 s85, s85, s3\ns_lshl_b32 s86, s60, 15\ns_mul_i32 s87, s60, {22*2048}\ns_add_u32 s87, s87, {64*2048}")
    F[11] = f + polld
    hpos = [98304, 114688, 131072, 0, 16384, 32768, 49152, 65536, 81920, 147456]
    def dmaW(h):
        base = hpos[h % 10]; o = []
        for t2 in range(2):
            if h < 8:
                o += L(f"s_add_u32 m0, s65, {base + t2*2048}\ns_add_u32 s66, s84, {(h>>1)*128 + (h&1)*32768 + t2*16384}")
                for c in range(2): o.append((f"buffer_load_dwordx4 v{BV+c}, s[40:43], s66 offen offset:{c*1024} lds", f"w{h}"))
            else:
                o += L(f"s_add_u32 m0, s65, {base + t2*2048}\ns_add_u32 s66, s85, {(h-8)*32768 + t2*16384}")
                for c in range(2): o.append((f"buffer_load_dwordx4 v{DV+c}, s[44:47], s66 offen offset:{c*1024} lds", f"w{h}"))
        return o
    f = ["#"]*10 + [("CHK", None)]
    f += L(f"v_cndmask_b32 v{PL}, 0, v{PL}, s[96:97]\nv_cndmask_b32 v{PL+2}, 0, v{PL+2}, s[96:97]\nv_cndmask_b32 v{PL+4}, 0, v{PL+4}, s[98:99]\nv_cndmask_b32 v{PL+6}, 0, v{PL+6}, s[98:99]")
    f += L(f"v_mul_f32 v{H}, v{W0R}, v{PL}\nv_mul_f32 v{H+1}, v{W0R}, v{PL+2}\nv_fma_f32 v{H}, -v{W0I}, v{PL+2}, v{H}\nv_fma_f32 v{H+1}, v{W0I}, v{PL}, v{H+1}")
    f += step(H+2, H+3, PL+4, PL+6, H, H+1, W1R, W1I)
    f.append((f"ds_write_b64 v{SEGW}, {vr(H+2,2)} offset:2048", "sw2"))
    ORS, ONM = W0R+1, W0R+2
    f += L(f"s_xor_b32 s3, s60, 1\ns_lshl_b32 s3, s3, 8\nv_add_u32 v6, s3, v{SEGR}")
    f.append(f"ds_read_b64 {vr(ORS,2)}, v6 offset:6656")
    f += dmaW(0)
    f += ["#"]*4 + [('@', "sw2"), f"v_mul_f32 v{ORS}, v{ORS}, v{ORS}", f"v_mul_f32 v{RS}, v{RS}, v{RS}"]
    F[12] = f
    f = []
    for sg in range(8): f.append(f"ds_read_b64 {vr(E+2*sg,2)}, v{SEGR} offset:{2048+256*sg}")
    for sg in range(1, 8): f += L(f"v_add_f32 v{E}, v{E}, v{E+2*sg}\nv_add_f32 v{E+1}, v{E+1}, v{E+2*sg+1}")
    f += step(H, H+1, E, E+1, POR, POI, PWR, PWI)
    cur = (H, H+1)
    for r in range(16):
        f += step(SRE+r, SIM+r, cur[0], cur[1], SRE+r, SIM+r, AR, AI); cur = (SRE+r, SIM+r)
    F[13] = f[:30] + dmaW(1) + f[30:60] + dmaW(2) + f[60:]
    f2 = []
    O = E
    for r in range(0, 16, 2):
        for e in range(2):
            rr, ii = SRE+r+e, SIM+r+e
            f2 += L(f"v_mul_f32 v{H+e}, v{GR}, v{rr}\nv_mul_f32 v{H+2+e}, v{GI}, v{rr}\nv_fma_f32 v{H+e}, -v{GI}, v{ii}, v{H+e}\nv_fma_f32 v{H+2+e}, -v{GR}, v{ii}, -v{H+2+e}")
        f2 += L(f"v_cvt_pk_bf16_f32 v{O+r//2}, v{H}, v{H+1}\nv_cvt_pk_bf16_f32 v{O+8+r//2}, v{H+2}, v{H+3}")
    for m in range(2):
        for h in range(2): f2.append(f"ds_write_b128 v{TRW}, {vr(O+8*m+4*h)} offset:{2048*m+16*h}")
    for m in range(2):
        for s in range(2):
            d = SRE + 8*m + 4*s
            f2.append(f"ds_read_b64_tr_b16 {vr(d,2)}, v{TRR} offset:{2048*m + 1024*s}")
            f2.append(f"ds_read_b64_tr_b16 {vr(d+2,2)}, v{TRR} offset:{2048*m + 1024*s + 256}")
    f2 += L("s_lshl_b32 s3, s62, 12\ns_add_u32 s63, s3, %d" % (32*2048))
    for m in range(2):
        for s in range(2):
            d = SRE + 8*m + 4*s
            f2.append((f"buffer_store_dwordx4 {vr(d)}, v{HDOFF}, s[56:59], {'s3' if m == 0 else 's63'} offen offset:{2048*s} sc1", "hs"))
    F[14] = f2 + dmaW(3)
    TAGV = TMP+24
    f = dmaW(4) + dmaW(5) + [f"v_mov_b32 v{TAGV}, s71"] + ["#"]*12 + [('@', "hs"), f"buffer_store_dword v{TAGV}, v{FLST}, s[56:59], 0 offen sc1"]
    f += ["#"]*10
    F[15] = f
    steps = [(t, c) for t in range(16) for c in range(4)]
    segs = {}; cur = []
    def open_stage(t):
        nonlocal cur
        cur.append(('@', f"st{t}"))
        cur = ["s_barrier"] + bump(t); segs[t] = cur
    pre = cur
    open_stage(0)
    def flat(x):
        o = []
        for y in x:
            if isinstance(y, list): o += y
            else: o.append(y)
        return o
    cur += flat(reads(0,0))
    for k, (t, c) in enumerate(steps):
        ms = mfmas(t, c)
        nxt = steps[k+1] if k+1 < len(steps) else None
        if nxt is None:
            cur += ms; break
        if nxt[1] == 0: open_stage(nxt[0])
        rs = reads(*nxt)
        if (t, c) == (7, 3):
            cur += flat(rs) + ms + [('POST',)]
            continue
        big = [i for i, m in enumerate(ms)]
        out = []
        if t < 8 : out = flat(rs) + ms
        else:
            pos = [0, 1, 3, 5]
            for i, m in enumerate(ms):
                for z, ps in enumerate(pos):
                    if ps == i: out += rs[z]
                out.append(m)
        cur += out
    put(p, pre)
    for t in range(16):
        lst = segs[t]
        fl = list(F[t])
        if 2 <= t <= 11: fl = (dma(t+4) + fl) if t < 8 else mix(fl, dma(t+4))
        if t == 8:
            k = lst.index(('POST',))
            head = lst[:k] + post; lst = lst[k+1:]
            put(p, head); st(2)
        lst = interleave(lst, glue(fl), None)
        for x in flat(lst):
            if isinstance(x, tuple) and x[0] == 'CHK':
                p(f"{name}_chk:"); put(p, chk); p(f"s_cbranch_scc1 {name}_slow\n{name}_go:")
            elif x == "#": pass
            elif isinstance(x, str) and x[0] in "X&": p(x[1:])
            else: put(p, [x])
        if t in (9, 11, 13): st({9:3, 11:4, 13:5}[t])
    st(6)
    FS = TMP+25
    pollS = f"buffer_load_dword v{FS}, v{FLLD}, s[56:59], 0 offen sc1"
    p(pollS)
    p(f"v_cmp_le_u32 vcc, 32, v{LANE}\ns_and_b32 s3, s60, 1\ns_lshl_b32 s3, s3, 11\nv_add_u32 v{CSW}, s3, v{CSW}")
    put(p, cs_pack(CSG, 8192, 2, "x2") + cs_pack(CSG+4, 9216, 5, "x2"))
    p(f"v_xor_b32 v2, 4, v{CSW}\nv_mov_b32 v3, 0")
    p(f"ds_write_b32 v2, v3 offset:8192\nds_write_b32 v2, v3 offset:9216")
    p(f"v_subrev_u32 v{CSW}, s3, v{CSW}")
    put(p, cs_pack(CSG+8, 12288, 2, "x2") + cs_pack(CSG+12, 13312, 5, "x2"))
    p(f"v_lshlrev_b32 v5, 4, v{LANE}\nv_add_u32 v5, {L_SCR}, v5\nv_add_u32 v6, s3, v5")
    NMO = TMP; NMX = TMP+4
    for k in range(4): p(f"v_mov_b32 v{NMO+k}, v{NM}\nv_mov_b32 v{NMX+k}, v{ONM}")
    p("s_waitcnt lgkmcnt(0)\ns_barrier")
    for m in range(2):
        p(f"ds_read_b128 {vr(WF+4*m)}, v6 offset:{8192+1024*m}\nds_read_b128 {vr(WF+8+4*m)}, v5 offset:{12288+1024*m}")
    put(p, dmaW(6) + dmaW(7))
    for m in range(2):
        p(M32(GACC+16*m, vr(WF+4*m), vr(NMO), False)); p(M32(GACC+32+16*m, vr(WF+4*m), vr(NMX), False)); p(M32(GACC+64+16*m, vr(WF+8+4*m), vr(NMO), False))
    put(p, dmaW(8))
    p("s_barrier")
    p(f"{name}_chkS:\nv_cmp_ne_u32 vcc, s71, v{FS}\ns_cmp_lg_u64 vcc, 0\ns_cbranch_scc1 {name}_slowS\n{name}_goS:")
    st(7)
    HV = TMP+26
    p(f"v_lshlrev_b32 v{HV}, 4, v{LANE}")
    NK = 38
    def hreg(k): return 8*(k % 32)
    def hload(k):
        sreg, kk = ("s86", k) if k < 16 else ("s87", k-16)
        o = []
        if kk % 2 == 0: o += L(f"s_add_u32 s88, {sreg}, {kk*2048}")
        for j in range(2): o.append(f"buffer_load_dwordx4 {ar(hreg(k)+4*j)}, v{HV}, s[36:39], s88 offen offset:{(kk&1)*2048+1024*j} sc1")
        return o
    ep = []
    p(f"s_and_b32 s3, s60, 1\ns_cmp_lt_u32 s62, 11\ns_cselect_b32 s63, 1, 0\ns_cselect_b32 s89, 0, {BIG}\ns_lshl_b32 s3, s3, s63\ns_add_u32 s3, s3, s70\ns_lshl_b32 s90, s3, 12\ns_add_u32 s90, s90, {64*2048}\ns_lshl_b32 s91, s70, 12\ns_add_u32 s91, s91, {64*2048+4096}")
    p(f"v_xor_b32 v2, 1024, v{HDOFF}\nv_add_u32 v3, s89, v{HDOFF}")
    for b, (rs_, voff, soff) in enumerate(((RS, HDOFF, "s90"), (ORS, 2, "s90"), (RS, 3, "s91"))):
        g0 = GACC + 32*b
        for r in range(16): ep.append(f"v_mul_f32 v{g0+r}, v{g0+r}, v{g0+16+r}")
        for r in range(16): ep.append(f"v_mul_f32 v{g0+r}, v{rs_}, v{g0+r}")
        for r in range(0,16,2): ep.append(f"v_cvt_pk_bf16_f32 v{g0+16+r//2}, v{g0+r}, v{g0+r+1}")
        for s in range(2): ep.append((f"buffer_store_dwordx4 {vr(g0+16+4*s)}, v{voff}, s[56:59], {soff} offen offset:{2048*s} sc1", "hg"))
    hl = [hload(k) for k in range(16)]
    for k, x in enumerate(ep):
        put(p, [x])
        if k % 8 == 7 and k//8 < 8: put(p, hl[k//8])
    for k in range(8, 16): put(p, hl[k])
    st(8)
    ACC = SRE
    WB = WF
    def wread(k):
        b = WB + 8*(k % 4); o = []
        if k < 16:
            for nb in range(2):
                h = 2*(k//4) + nb
                if k % 4 == 0: o.append(('@', f"w{h}"))
                o.append(('RD', f"ds_read_b128 {vr(b+4*nb)}, v%d offset:%d", CA + k % 4, hpos[h % 10]))
        else:
            h = 8 + (k-16)//2; s = (k-16) % 2
            if s == 0: o.append(('@', f"w{h}"))
            for nb in range(2):
                for z in range(2):
                    o.append(('RD', f"ds_read_b64_tr_b16 {vr(b+4*nb+2*z,2)}, v%d offset:%d", DA+nb, hpos[h % 10] + 2048*s + 1024*z))
        return o
    CAH = GO; DAH = G1+0
    CAH2 = TMP
    for s in range(4): p(f"v_add_u32 v{CAH+s}, 65536, v{CA+s}\nv_add_u32 v{CAH2+s}, 131072, v{CA+s}")
    for nb in range(2): p(f"v_add_u32 v{DAH+nb}, 65536, v{DA+nb}\nv_add_u32 v{DAH+2+nb}, 131072, v{DA+nb}")
    def rd_fix(x):
        _, fmt, reg, off = x
        w_ = off >> 16
        if w_:
            if CA <= reg < CA+4: reg = (CAH, CAH2)[w_-1] + reg - CA
            else: reg = DAH + 2*(w_-1) + reg - DA
        return fmt % (reg, off & 0xffff)
    def putw(lst):
        return [rd_fix(x) if isinstance(x, tuple) and x[0] == 'RD' else x for x in lst]
    FG = TMP+27
    pollG = f"buffer_load_dword v{FG}, v{FLLD}, s[56:59], s92 offen sc1"
    p("s_mov_b32 s92, 4096")
    put(p, putw(wread(0)) + putw(wread(1)))
    XB = GACC+64; SB = XB+8; DB = XB+16; EA = XB+18
    kflag = opt.get('kflag', 2); kpoll = opt.get('kpoll', 6); kchk = opt.get('kchk', 9)
    nexth = 9
    hq = list(range(16, NK))
    for k in range(NK):
        hb = hreg(k); wb = WB + 8*(k % 4)
        ms = [M32(ACC+16*(2*i+j), vr(wb+4*i), ar(hb+4*j), k == 0) for i in range(2) for j in range(2)]
        fl = putw(wread(k+2)) if k+2 < NK else []
        put(p, interleave(ms, fl, None))
        if k == kflag:
            p.wait_tag("hg"); p(f"buffer_store_dword v{TAGV}, v{FLST}, s[56:59], s92 offen sc1")
        if k == 0: put(p, dmaW(9))
        done_h = (2*((k+1)//4) if k+1 <= 16 else 8 + (k+1-16)//2)
        while nexth+1 < 19 and nexth+1 - 10 < done_h:
            nexth += 1; put(p, dmaW(nexth))
        if k == kpoll: p(pollG)
        if k == kchk:
            p(f"{name}_chkG:\nv_cmp_ne_u32 vcc, s71, v{FG}\ns_cmp_lg_u64 vcc, 0\ns_cbranch_scc1 {name}_slowG\n{name}_goG:")
            st(9)
        if k >= kchk:
            n_ = 0
            while hq and n_ < 3 and (hq[0] < 32 or hq[0] - 32 <= k):
                put(p, hload(hq.pop(0))); n_ += 1
        if k == 30:
            p(f"v_lshrrev_b32 v4, 4, v{LANE}\ns_lshl_b32 s3, s60, 4\nv_add_u32 v4, s3, v4\nv_and_b32 v5, 15, v{LANE}")
            p(f"s_lshl_b32 s3, s80, 6\nv_add_u32 v6, s3, v4\ns_lshl_b32 s3, s81, 6\nv_lshl_add_u32 v7, v5, 2, s3")
            p(f"v_lshlrev_b32 v2, 9, v6\nv_add_u32 v2, v2, v7\nv_lshlrev_b32 v{EA}, 1, v2\nv_lshlrev_b32 v{EA+1}, 2, v2\nv_lshlrev_b32 v{EA+2}, 3, v6\nv_lshlrev_b32 v{EA+3}, 1, v7\nv_add_u32 v{EA+2}, {ST_OFF}, v{EA+2}")
            for it in range(4):
                if it: p(f"v_add_u32 v{EA}, 4096, v{EA}")
                p(f"global_load_dwordx2 {vr(XB+2*it,2)}, v{EA}, s[4:5]")
                p(f"buffer_load_dwordx2 {vr(SB+2*it,2)}, v{EA+2}, s[56:59], 0 offen offset:{32*it} sc1")
            p(f"global_load_dwordx2 {vr(DB,2)}, v{EA+3}, s[20:21]")
    st(10)
    PITCH = 272; TILE = 64*PITCH
    T = EA+4
    p(f"v_and_b32 v2, 31, v{LANE}\nv_bfe_u32 v3, v2, 2, 1\nv_lshlrev_b32 v3, 4, v3\nv_lshrrev_b32 v6, 3, v2\nv_lshl_add_u32 v3, v6, 2, v3\nv_and_b32 v6, 3, v2\nv_add_u32 v3, v3, v6")
    p(f"v_mul_u32_u24 v3, {PITCH}, v3\nv_lshrrev_b32 v6, 5, v{LANE}\nv_lshl_add_u32 v3, v6, 4, v3\ns_mul_i32 s3, s60, {TILE}\nv_add_u32 v3, s3, v3")
    p(f"v_mul_u32_u24 v7, {PITCH}, v4\nv_lshl_add_u32 v7, v5, 4, v7\nv_add_u32 v6, {2*TILE}, v7")
    p("s_waitcnt lgkmcnt(0)\ns_barrier")
    for i in range(2):
        for j in range(2):
            c = ACC + 16*(2*i+j)
            for g_ in range(4): p(f"ds_write_b128 v3, {vr(c+4*g_)} offset:{j*32*PITCH + i*128 + g_*32}")
    BT = WF
    p(f"v_lshlrev_b32 v{T}, 16, v{DB}\nv_and_b32 v{T+1}, 0xffff0000, v{DB}\nv_lshlrev_b32 v{T+2}, 16, v{DB+1}\nv_and_b32 v{T+3}, 0xffff0000, v{DB+1}")
    for it in range(4):
        Xr = WF+16; Y = BT+4*it; Z = WF+20
        xb = XB+2*it; m = SB+2*it; rs = m+1
        p(f"v_lshlrev_b32 v{Xr}, 16, v{xb}\nv_and_b32 v{Xr+1}, 0xffff0000, v{xb}\nv_lshlrev_b32 v{Xr+2}, 16, v{xb+1}\nv_and_b32 v{Xr+3}, 0xffff0000, v{xb+1}")
        for e in range(4): p(f"v_sub_f32 v{Y+e}, v{Xr+e}, v{m}")
        def rnd():
            p(f"v_cvt_pk_bf16_f32 v{Z}, v{Y}, v{Y+1}\nv_cvt_pk_bf16_f32 v{Z+1}, v{Y+2}, v{Y+3}")
            p(f"v_lshlrev_b32 v{Y}, 16, v{Z}\nv_and_b32 v{Y+1}, 0xffff0000, v{Z}\nv_lshlrev_b32 v{Y+2}, 16, v{Z+1}\nv_and_b32 v{Y+3}, 0xffff0000, v{Z+1}")
        rnd()
        for e in range(4): p(f"v_mul_f32 v{Y+e}, v{Y+e}, v{rs}")
        rnd()
        for e in range(4): p(f"v_mul_f32 v{Y+e}, v{Y+e}, v{T+e}")
        rnd()
        for e in range(4): p(f"v_add_f32 v{Y+e}, v{Y+e}, v{Xr+e}")
    p("s_waitcnt lgkmcnt(0)\ns_barrier")
    for it in range(4):
        for w in range(4):
            r = ACC + (it*4 + w)*4
            p(f"ds_read_b128 {vr(r)}, v{7 if w < 2 else 6} offset:{(w&1)*TILE + it*4*PITCH}")
    p(f"s_lshl_b32 s3, s80, 3\ns_add_u32 s3, s3, s81\ns_mov_b32 s63, {BIG}\ns_cmp_eq_u32 s3, 248\ns_cselect_b32 s3, {EPOCH_OFF}, s63\nv_mov_b32 v2, s3\nv_mov_b32 v3, {BIG}\nv_cmp_eq_u32 vcc, 0, v0\nv_cndmask_b32 v2, v3, v2, vcc")
    p(f"buffer_store_dword v{TAGV}, v2, s[56:59], 0 offen sc1")
    for it in range(4):
        r0 = ACC + it*16
        for w in range(4):
            for e in range(4): p(f"v_add_f32 v{r0+e}, v{r0+e}, v{BT+4*it+e if w == 0 else r0+4*w+e}")
        if it: p(f"v_add_u32 v{EA+1}, 8192, v{EA+1}")
        p(f"global_store_dwordx4 v{EA+1}, {vr(r0)}, s[30:31]")
    if diag:
        st(11); p("s_waitcnt vmcnt(0)"); st(12)
        p("v_writelane_b32 v95, s78, 15")
        stamp_flush(p, STAMP_OFF)
    p(f"{name}_done:\ns_endpgm")
    a.begin(name)
    for l in p.finalize(True): a(l)
    for sfx, ld in (("", polld), ("S", [pollS]), ("G", [pollG])):
        a(f"{name}_slow{sfx}:\ns_sleep 1")
        for l in ld: a(l)
        a(f"s_waitcnt vmcnt(0)\ns_sub_u32 s78, s78, 1\ns_cmp_eq_u32 s78, 0\ns_cbranch_scc1 {name}_go{sfx}\ns_branch {name}_chk{sfx}")
    a.end(name, 512, 102, 256)
    return 163840

def mix(a_, b_):
    groups = []; cur = []
    for x in b_:
        cur.append(x)
        if isinstance(x, tuple): groups.append(cur); cur = []
    a_ = glue(a_)
    if not a_: return groups
    out = []; k = 0
    for i, x in enumerate(a_):
        while k < len(groups) and k*len(a_) <= i*len(groups): out.append(groups[k]); k += 1
        out.append(x)
    out += groups[k:]
    return out
def glue(lst):
    out = []; i = 0
    while i < len(lst):
        x = lst[i]
        if isinstance(x, str) and x.startswith('&'):
            g_ = []
            while i < len(lst) and isinstance(lst[i], str) and lst[i].startswith('&'): g_.append(lst[i]); i += 1
            out.append(g_); continue
        if isinstance(x, str) and x.startswith('s_cmp'):
            g_ = [x]; i += 1
            while i < len(lst) and isinstance(lst[i], str) and lst[i].startswith('s_cselect'): g_.append(lst[i]); i += 1
            out.append(g_); continue
        out.append(x); i += 1
    return out

if __name__ == "__main__":
    import argparse
    ap = argparse.ArgumentParser(); ap.add_argument("out"); ap.add_argument("--diag", action="store_true")
    ap.add_argument("--xmap", type=int, default=1); ap.add_argument("--opt", type=str, default="{}")
    args = ap.parse_args()
    a = Asm()
    lds = gen(a, KN, args.diag, args.xmap, opt=eval(args.opt)); a.add_launch(KN, 256, 256, lds)
    a(".fill 8192, 4, 0xbf800000")
    open(args.out, "w").write(a.text("generated by work/gen2.py"))
```

```python
import re
_reg = re.compile(r'(?<![\w.])([vas])(?:(\d+)(?![\w\[])|\[(\d+):(\d+)\])')
def regs_of(op):
    out = set()
    for m in _reg.finditer(op):
        k = m.group(1)
        if m.group(2) is not None: out.add((k, int(m.group(2))))
        else:
            for r in range(int(m.group(3)), int(m.group(4))+1): out.add((k, r))
    if re.search(r"\bvcc(_lo|_hi)?\b", op): out.add(('s', 'vcc'))
    if re.search(r'\bexec\b', op): out.add(('s', 'exec'))
    if re.search(r'\bm0\b', op): out.add(('s', 'm0'))
    return out
TRANS = ('v_exp_f32','v_log_f32','v_rcp_f32','v_rsq_f32','v_sqrt_f32','v_sin_f32','v_cos_f32')
class I:
    __slots__ = ('text','tag','mn','kind','rd','wr','passes','srcc','ab','wide','raw','lds')
    def __init__(self, text, tag=None, raw=False):
        self.text = text; self.tag = tag; self.raw = raw
        t = text.split(';')[0].strip()
        parts = t.split(None, 1)
        mn = parts[0]; self.mn = mn
        rest = parts[1] if len(parts) > 1 else ''
        ops = [o.strip() for o in rest.split(',')]
        R = [regs_of(o) for o in ops]
        allr = set().union(*R) if R else set()
        self.passes = 0; self.srcc = set(); self.ab = set(); self.wide = False; self.lds = False
        if t.endswith(':') or mn.startswith('.') or mn == '@':
            self.kind = 'pseudo'; self.rd = set(); self.wr = set()
        elif mn.startswith('v_mfma'):
            self.kind = 'mfma'; self.wr = R[0]; self.ab = R[1] | R[2]; self.srcc = R[3]; self.rd = self.ab | self.srcc
            self.passes = 8 if '32x32x16' in mn else 4 if '16x16x32' in mn else 16
        elif mn.startswith('v_'):
            self.kind = 'valu'
            self.wr = set(R[0]); self.rd = set().union(*R[1:]) if len(R) > 1 else set()
            if mn.startswith(('v_add_co','v_sub_co','v_addc_co','v_subb_co')):
                self.wr |= R[1]; self.rd = set().union(*R[2:])
            if mn.startswith(('v_fmac','v_dot2c','v_writelane','v_pk_fmac')): self.rd |= R[0]
            if mn.startswith('v_permlane') and 'swap' in mn:
                self.wr = R[0] | R[1]; self.rd = R[0] | R[1]
            if 'dpp' in mn or 'row_' in t or 'quad_perm' in t: self.rd |= R[0]
        elif mn.startswith('ds_'):
            self.kind = 'ds'
            if mn.startswith(('ds_read','ds_bpermute','ds_permute','ds_swizzle')):
                self.wr = R[0]; self.rd = set().union(*R[1:])
            else: self.wr = set(); self.rd = allr
        elif mn.startswith(('buffer_','global_')):
            self.kind = 'vmem'
            toks = t.split()
            if 'lds' in toks:
                self.wr = set(); self.rd = allr | {('s','m0')}; self.lds = True
            elif '_load' in mn or ('atomic' in mn and 'sc0' in toks and mn.startswith('global')):
                self.wr = R[0]; self.rd = set().union(*R[1:])
                if 'd16' in mn: self.rd |= R[0]
            else:
                self.wr = set(); self.rd = allr
                self.wide = mn.endswith(('x3','x4'))
        elif mn.startswith(('s_load','s_memtime','s_memrealtime','s_buffer_load')):
            self.kind = 'smem'; self.wr = R[0]; self.rd = set().union(*R[1:]) if len(R) > 1 else set()
        elif mn.startswith('s_'):
            self.kind = 'salu'
            if mn.startswith(('s_cmp','s_waitcnt','s_barrier','s_branch','s_cbranch','s_nop','s_sleep','s_endpgm','s_setprio','s_bitcmp')):
                self.wr = set(); self.rd = allr
            else:
                self.wr = set(R[0]); self.rd = set().union(*R[1:]) if len(R) > 1 else set()
                if 'saveexec' in mn: self.wr.add(('s','exec'))
        else:
            raise Exception("unknown instr " + text)

def states(i):
    if i.kind == 'pseudo': return 0
    if i.mn == 's_nop': return int(i.text.split()[1], 0) + 1
    return 1

def need(p, c):
    n = 0
    vw = {r for r in p.wr if r[0] in 'va'}
    sw = {r for r in p.wr if r[0] == 's'}
    if p.kind == 'valu':
        if c.kind == 'mfma' and vw & c.rd: n = max(n, 2)
        if p.mn in TRANS and c.kind == 'valu' and vw & c.rd: n = max(n, 1)
        if p.mn in TRANS and c.kind in ('vmem','ds') and vw & c.rd: n = max(n, 1)
        if c.kind == 'valu' and vw & c.rd:
            if c.mn.startswith(('v_readlane','v_readfirstlane')): n = max(n, 1)
            if c.mn.startswith('v_permlane') or 'dpp' in c.mn or 'row_' in c.text or 'quad_perm' in c.text: n = max(n, 2)
        if sw & c.rd:
            if c.kind == 'valu': n = max(n, 4 if c.mn.startswith(('v_readlane','v_writelane')) else 2)
            if c.kind == 'vmem': n = max(n, 5)
            if c.kind in ('salu','smem'): n = max(n, 2)
        if 'sdwa' in p.mn and c.kind == 'valu' and vw & (c.rd | c.wr): n = max(n, 1)
    if p.kind == 'mfma':
        big = {4: 8, 8: 12, 16: 20}[p.passes]
        if c.kind == 'mfma':
            if p.wr & c.ab: n = max(n, big)
            if p.wr & c.srcc and not (p.wr == c.srcc and p.passes == c.passes): n = max(n, big-2)
            if p.wr & c.wr and not (p.wr & c.srcc): n = max(n, big)
        elif c.kind in ('valu','vmem','ds'):
            if p.wr & (c.rd | c.wr): n = max(n, big)
            if c.kind == 'valu' and p.srcc & c.wr: n = max(n, {4:3, 8:7, 16:15}[p.passes])
    if p.kind == 'salu' and ('s','m0') in p.wr and c.kind == 'vmem' and c.lds: n = max(n, 1)
    if p.kind == 'vmem' and p.wide and c.kind in ('valu','mfma','ds','vmem'):
        data = {r for r in p.rd if r[0] in 'va'}
        if data & c.wr: n = max(n, 2)
    return n

class Prog:
    def __init__(self): self.items = []
    def __call__(self, s, tag=None):
        for l in s.split('\n'):
            l = l.strip()
            if l: self.items.append(I(l, tag))
    def add(self, i): self.items.append(i)
    def wait_tag(self, tag): self.items.append(I('@ ' + tag))
    def finalize(self, verbose=False):
        out = []
        lg = []
        vm = []
        nnop = 0
        def emit(i): out.append(i)
        def do_wait(vn, ln):
            nonlocal lg, vm
            parts = []
            if vn is not None and vn < len(vm):
                vn = min(vn, 63); parts.append(f'vmcnt({vn})'); vm = vm[len(vm)-vn:] if vn else []
            if ln is not None and ln < len(lg):
                if any(x.kind == 'smem' for x in lg): ln = 0
                ln = min(ln, 15); parts.append(f'lgkmcnt({ln})'); lg = lg[len(lg)-ln:] if ln else []
            if parts: emit(I('s_waitcnt ' + ' '.join(parts)))
        for i in self.items:
            if i.mn == '@':
                tag = i.text.split()[1]
                idx = [k for k, x in enumerate(vm) if x.tag == tag]
                if idx: do_wait(len(vm)-1-idx[-1], None)
                idx = [k for k, x in enumerate(lg) if x.tag == tag]
                if idx: do_wait(None, len(lg)-1-idx[-1])
                continue
            if i.kind == 'pseudo':
                emit(i); continue
            if i.mn == 's_waitcnt':
                m = re.search(r'vmcnt\((\d+)\)', i.text)
                if m:
                    n = int(m.group(1)); vm = vm[len(vm)-n:] if 0 < n < len(vm) else ([] if n == 0 else vm)
                m = re.search(r'lgkmcnt\((\d+)\)', i.text)
                if m:
                    n = int(m.group(1)); lg = lg[len(lg)-n:] if 0 < n < len(lg) else ([] if n == 0 else lg)
                emit(i); continue
            touch = i.rd | i.wr
            vn = ln = None
            for k in range(len(vm)-1, -1, -1):
                if vm[k].wr & touch: vn = len(vm)-1-k; break
            for k in range(len(lg)-1, -1, -1):
                if lg[k].wr & touch: ln = len(lg)-1-k; break
            do_wait(vn, ln)
            dist = 0; req = 0
            for p in reversed(out):
                if dist >= 20: break
                n = need(p, i) if p.kind != 'pseudo' else 0
                if n > dist: req = max(req, n - dist)
                dist += states(p)
            while req > 0:
                k = min(req, 16); emit(I(f's_nop {k-1}')); req -= k; nnop += 1
            emit(i)
            if i.kind == 'vmem': vm.append(i)
            if i.kind in ('ds','smem'): lg.append(i)
        if verbose: print("instrs", len(out), "nops inserted", nnop)
        return [x.text for x in out]

def merge(main, fill, per=4, start=0):
    pass
```

```python
import sys; sys.path.insert(0,"work")
from g import *
from sched import *
from gen import vr, ar, srdp, put, L, load_args, interleave, LOG2E, INV2PI, BIG, NKS
from gen2 import mix, glue
STG_OFF  = 10<<20
AGG_OFF  = (10<<20) + (64<<10)
EPOCH_OFF = (10<<20) + (256<<10)
FLG_OFF  = (10<<20) + (320<<10)
STAMP_OFF = 16<<20
WS_USED = 11<<20
SLOT = 24576
L_SCR = 147456
SPIN = 200000
SV = 71
CLK = ["s_memrealtime"]
def stamp(p, slot):
    p(f"{CLK[0]} s[100:101]\ns_waitcnt lgkmcnt(0)\nv_writelane_b32 v{SV}, s100, {slot}")
def stamp_flush(p, off):
    p("s_waitcnt vmcnt(0) lgkmcnt(0)")
    p(f"s_lshl_b32 s3, s2, 6\ns_add_u32 s3, s3, {off}\nv_lshl_add_u32 v2, v0, 2, s3\nv_cmp_gt_u32 vcc, 16, v0\ns_and_saveexec_b64 s[78:79], vcc\ns_cbranch_execz L_stf")
    p(f"global_store_dword v2, v{SV}, s[34:35]\nL_stf:\ns_mov_b64 exec, s[78:79]")
def flat(x):
    o = []
    for y in x:
        if isinstance(y, list): o += flat(y)
        else: o.append(y)
    return o
def srdl(d, b, nbytes): return L(f"s_mov_b32 s{d}, s{b}\ns_and_b32 s{d+1}, s{b+1}, 0xffff\ns_mov_b32 s{d+2}, {nbytes}\ns_mov_b32 s{d+3}, 0x00020000")

def groups_of(b_):
    groups = []; cur = []
    for x in b_:
        cur.append(x)
        if isinstance(x, tuple): groups.append(cur); cur = []
    return groups
def inter2(main, parts):
    ism = lambda m: isinstance(m, str) and m.startswith('v_mfma')
    nm = sum(1 for m in main if ism(m))
    P = []
    for a_, b_, it in parts:
        if isinstance(a_, float): a_ = int(round(a_*nm))
        if b_ is None: b_ = nm
        if isinstance(b_, float): b_ = int(round(b_*nm))
        assert a_ < b_ <= nm, (a_, b_, nm)
        P.append([a_, b_, it, 0])
    out = []; seen = 0
    for m in main:
        out.append(m)
        if ism(m):
            seen += 1
            for q in P:
                a_, b_, it, k = q
                if seen > a_:
                    tgt = min(len(it), (len(it)*(seen-a_) + (b_-a_) - 1)//(b_-a_))
                    out += it[k:tgt]; q[3] = max(k, tgt)
    return out

def gen(a, name, diag=False, xmap=1, codebytes=24576, opt=None):
    opt = opt or {}
    if opt.get('cyc'): CLK[0] = 's_memtime'
    p = Prog()
    LANE=1
    XV=8; RO=12; RX=16; RB=20; CSB=24; TMP=8
    BV=36; GV=38; UV=41; GA=44; GB=48
    AR,AI,A16R,A16I,PWR,PWI,GR,GI,W0R,W0I,W1R,W1I = range(52,64)
    HDOFF=64; AGST=65; AGLD=66; SEGW=67; SEGR=68; TRW=69; TRR=70; POR,POI=72,73; RS=74; NM=75; ORS=76; ONM=77; FLST=78; FLLD=79
    SEL=80; CSG=84
    SRE=96; SIM=112; GACC=128; WF=224
    PT=GACC
    XO=0; XX=128
    slot = lambda t: (t % 6)*SLOT
    stamps = opt.get('stamps', None)
    def st(k):
        if diag and (stamps is None or k in stamps): stamp(p, k)
    slow = []
    def emit(lst):
        for x in flat(lst):
            if isinstance(x, tuple) and x[0] == 'CHK':
                _, sfx, code, ld = x
                p(f"{name}_chk{sfx}:"); put(p, code); p(f"s_cbranch_scc1 {name}_slow{sfx}\n{name}_go{sfx}:")
                slow.append((sfx, ld))
            elif isinstance(x, tuple) and x[0] == 'ST': st(x[1])
            elif x == "#": pass
            elif isinstance(x, str) and x[0] in "X&": p(x[1:])
            else: put(p, [x])
    p(f"s_cmp_ge_u32 s2, 256\ns_cbranch_scc1 {name}_done")
    load_args(p)
    p("s_getpc_b64 s[76:77]")
    p(f"v_lshrrev_b32 v5, 6, v0\nv_and_b32 v{LANE}, 63, v0\ns_and_b32 s3, s2, 7\nv_readfirstlane_b32 s60, v5\ns_lshr_b32 s63, s2, 3")
    nl = codebytes//128//32
    p(f"s_mul_i32 s64, s63, {nl*128}\nv_min_u32 v2, {nl-1}, v0\nv_lshl_add_u32 v2, v2, 7, s64\nglobal_load_dword v{PT+40}, v2, s[76:77]")
    if xmap == 1:
        p("s_and_b32 s61, s3, 1\ns_lshl_b32 s61, s61, 3\ns_and_b32 s64, s63, 7\ns_add_u32 s61, s61, s64")
        p("s_lshr_b32 s62, s3, 1\ns_lshl_b32 s62, s62, 2\ns_lshr_b32 s64, s63, 3\ns_add_u32 s62, s62, s64")
    else:
        p("s_lshl_b32 s61, s3, 1\ns_lshr_b32 s64, s63, 4\ns_add_u32 s61, s61, s64\ns_and_b32 s62, s63, 15")
    p("s_lshl_b32 s76, s62, 1\ns_add_u32 s76, s76, s61\ns_and_b32 s76, s76, 7" if opt.get('rot', 1) else "s_mov_b32 s76, 0")
    p("s_lshl_b32 s80, s3, 2\ns_lshr_b32 s64, s63, 3\ns_add_u32 s80, s80, s64\ns_and_b32 s81, s63, 7")
    p(f"v_lshrrev_b32 v2, 3, v{LANE}\nv_and_b32 v3, 7, v{LANE}\nv_lshrrev_b32 v5, 1, v2\nv_xor_b32 v5, v5, v3\nv_lshlrev_b32 v5, 4, v5")
    p(f"v_lshl_add_u32 v{BV}, v2, 10, v5\nv_xor_b32 v{BV+1}, 64, v{BV}\nv_add_u32 v{BV+1}, 7168, v{BV+1}")
    p(f"v_lshrrev_b32 v6, 2, v2\nv_and_b32 v7, 3, v2\nv_lshl_add_u32 v6, v6, 4, v7\nv_lshl_add_u32 v{XV}, v6, 10, v5")
    p(f"v_xor_b32 v6, 64, v{XV}\nv_add_u32 v{XV+1}, 3072, v6\nv_add_u32 v{XV+2}, 6144, v{XV}\nv_add_u32 v{XV+3}, 9216, v6")
    p("s_lshl_b32 s64, s61, 7\ns_lshl_b32 s65, s60, 5\ns_add_u32 s64, s64, s65\ns_lshl_b32 s64, s64, 10")
    p("s_lshl_b32 s65, s60, 12")
    p("s_lshl_b32 s67, s62, 5\ns_and_b32 s68, s60, 1\ns_lshl_b32 s68, s68, 4\ns_add_u32 s67, s67, s68\ns_lshl_b32 s67, s67, 10")
    p("s_lshl_b32 s68, s60, 11\ns_add_u32 s68, s68, 16384")
    P0 = PT+24; HF = PT+42; XR = PT+44
    p(f"v_and_b32 v{P0}, 31, v0\ns_lshl_b32 s70, s62, 5\nv_add_u32 v{P0+1}, s70, v{P0}\nv_lshlrev_b32 v{P0+2}, 1, v{P0+1}\nv_lshrrev_b32 v{HF}, 5, v{LANE}")
    p(f"s_lshl_b32 s69, s61, 7\ns_lshl_b32 s3, s62, 3\ns_add_u32 s69, s69, s3\ns_lshl_b32 s3, s60, 1\ns_add_u32 s69, s69, s3\ns_lshl_b32 s3, s69, 10")
    p(f"v_lshlrev_b32 v6, 4, v{P0}\nv_lshl_add_u32 v6, v{HF}, 10, v6")
    p("s_waitcnt lgkmcnt(0)")
    srdp(p, 36, 4, 2048*1024)
    p(f"buffer_load_dwordx4 {vr(XR)}, v6, s[36:39], s3 offen\nbuffer_load_dwordx4 {vr(XR+4)}, v6, s[36:39], s3 offen offset:512")
    p("s_cmp_lt_u32 s60, 2\ns_cselect_b32 s40, s10, s12\ns_cselect_b32 s41, s11, s13\ns_and_b32 s41, s41, 0xffff\ns_mov_b32 s42, %d\ns_mov_b32 s43, 0x20000" % (512*1024))
    def dmaS(t):
        o = L(f"s_add_u32 s77, s76, {t}\ns_and_b32 s77, s77, 7\ns_lshl_b32 s77, s77, 7\ns_add_u32 m0, s65, {slot(t)}\ns_add_u32 s66, s64, s77")
        for c in range(4): o.append((f"buffer_load_dwordx4 v{XV+c}, s[36:39], s66 offen offset:{c*1024} lds", f"st{t}"))
        o += L(f"s_add_u32 m0, s68, {slot(t)}\ns_add_u32 s66, s67, s77")
        for c in range(2): o.append((f"buffer_load_dwordx4 v{BV+c}, s[40:43], s66 offen offset:{c*1024} lds", f"st{t}"))
        return o
    def dmaG(tt):
        t = 8+tt
        o = L(f"s_add_u32 s77, s76, {tt}\ns_and_b32 s77, s77, 7\ns_mul_i32 s77, s77, {64*2752}\ns_add_u32 s66, s74, s77")
        for m, (sr, vv) in enumerate(((48, GV), (52, UV))):
            o += L(f"s_add_u32 m0, s75, {slot(t) + m*3072}")
            for pp in range(3):
                o.append((f"buffer_load_dwordx4 v{vv+pp}, s[{sr}:{sr+3}], s66 offen offset:{pp*1024} lds", f"st{t}"))
        return o
    def dma(t): return dmaS(t) if t < 8 else dmaG(t-8)
    put(p, dma(0))
    if diag: p(f"v_mov_b32 v{SV}, 0")
    st(0)
    p(f"s_add_u32 s72, s34, {EPOCH_OFF}\ns_addc_u32 s73, s35, 0\ns_load_dword s71, s[72:73], 0")
    p(f"global_load_ushort v{P0+3}, v{P0+2}, s[6:7]\nglobal_load_ushort v{P0+4}, v{P0+2}, s[8:9]\nglobal_load_ushort v{P0+5}, v{P0+2}, s[18:19]")
    put(p, dma(1))
    p(f"s_cmp_lt_u32 s60, 2\ns_cselect_b32 s44, s24, s26\ns_cselect_b32 s45, s25, s27\ns_and_b32 s45, s45, 0xffff\ns_mov_b32 s47, 0x20000\ns_mov_b32 s46, {512*2752}")
    p(f"s_lshl_b32 s63, s2, 1\ns_and_b32 s3, s60, 1\ns_add_u32 s63, s63, s3\ns_mul_i32 s63, s63, 22")
    p(f"v_min_u32 v5, 21, v{LANE}\nv_add_u32 v5, s63, v5\nv_lshlrev_b32 v{PT+43}, 7, v5")
    touch1 = [(f"buffer_load_dword v{PT+41}, v{PT+43}, s[44:47], 0 offen", "t1")]
    q = srdl(48, 24, 512*2752) + srdl(52, 26, 512*2752) + srdl(56, 34, WS_USED)
    q += L(f"v_bfe_u32 v5, v{P0}, 1, 3\nv_xor_b32 v5, v5, v{HF}\nv_lshlrev_b32 v5, 4, v5\nv_lshl_add_u32 v5, v{P0}, 7, v5\ns_lshl_b32 s3, s60, 5\nv_xor_b32 v5, s3, v5\ns_xor_b32 s63, s65, 4096")
    for c in range(4):
        q += L(f"v_xor_b32 v6, {32*c}, v5\nv_add_u32 v{RO+c}, s65, v6\nv_add_u32 v{RX+c}, s63, v6\nv_add_u32 v{RB+c}, 16384, v6")
    q += L(f"v_bfe_u32 v5, v{LANE}, 4, 1\nv_bfe_u32 v6, v{LANE}, 2, 1\nv_cmp_eq_u32 vcc, v5, v6\nv_mov_b32 v5, 0x3f803f80\nv_cndmask_b32 v{SEL}, 0, v5, vcc")
    for e in range(1,4): q.append(f"v_mov_b32 v{SEL+e}, v{SEL}")
    q += L(f"s_cmp_lt_u32 s62, 11\ns_cselect_b32 s3, 0, 32\ns_cselect_b32 s63, 0, {BIG}")
    for pp in range(3):
        q += L(f"v_add_u32 v6, {64*pp}, v{LANE}\nv_mul_u32_u24 v7, {(65536+11)//12}, v6\nv_lshrrev_b32 v7, 16, v7\nv_mul_u32_u24 v5, 12, v7\nv_sub_u32 v6, v6, v5\nv_mul_u32_u24 v7, 2752, v7")
        if pp: q.append(f"v_subrev_u32 v7, {1024*pp}, v7")
        for m, vv in enumerate((GV, UV)):
            d = vv+pp
            if m: q.append("v_xor_b32 v6, 2, v6")
            q += L(f"v_lshl_add_u32 v{d}, v6, 4, v7\nv_cmp_le_u32 vcc, 6, v6\nv_subrev_u32 v5, s3, v{d}\nv_cndmask_b32 v{d}, v{d}, v5, vcc")
            q += L(f"v_lshrrev_b32 v4, 1, v6\nv_mov_b32 v3, 0x24\nv_bfe_u32 v4, v3, v4, 1\nv_cmp_eq_u32 vcc, 1, v4\nv_add_u32 v5, s63, v{d}\nv_cndmask_b32 v{d}, v{d}, v5, vcc")
    q += L(f"v_bfe_u32 v5, v{LANE}, 2, 2\nv_lshl_add_u32 v5, v{HF}, 3, v5\nv_mul_u32_u24 v7, 192, v5\nv_and_b32 v5, 3, v{LANE}\nv_lshl_add_u32 v7, v5, 3, v7\nv_bfe_u32 v5, v{LANE}, 4, 1")
    q += L("s_and_b32 s83, s60, 1\ns_lshl_b32 s3, s83, 6\ns_sub_u32 s63, 3104, s3\ns_add_u32 s3, s3, 3040")
    q += L(f"v_mul_u32_u24 v6, s63, v5\nv_mul_u32_u24 v4, s3, v5\nv_add_u32 v6, v6, v7\nv_add_u32 v4, v4, v7\ns_mul_i32 s83, s83, 96\ns_add_u32 s83, s83, {2*SLOT}")
    for c in range(4):
        q += L(f"s_xor_b32 s3, s60, {c}\ns_mul_i32 s3, s3, 6144\ns_add_u32 s3, s3, s83\nv_add_u32 v{GA+c}, s3, v6\nv_add_u32 v{GB+c}, s3, v4")
    q += L("s_mul_i32 s70, s62, 3\ns_lshl_b32 s74, s62, 1\ns_add_u32 s74, s74, 11\ns_cmp_lt_u32 s62, 11\ns_cselect_b32 s70, s70, s74")
    q += L(f"s_lshl_b32 s74, s70, 6\ns_mul_i32 s75, s60, {16*2752}\ns_add_u32 s74, s74, s75\ns_mul_i32 s75, s60, 6144")
    q += L(f"s_lshl_b32 s82, s61, 1\ns_lshr_b32 s63, s60, 1\ns_add_u32 s82, s82, s63\ns_mul_i32 s3, s82, {NKS*2048}\ns_and_b32 s63, s60, 1\ns_lshl_b32 s63, s63, 10\ns_add_u32 s3, s3, s63")
    q += L(f"v_lshlrev_b32 v{HDOFF}, 4, v{LANE}\nv_add_u32 v{HDOFF}, s3, v{HDOFF}")
    q += L(f"s_lshl_b32 s3, s82, 7\ns_lshl_b32 s63, s62, 3\ns_add_u32 s3, s3, s63\ns_and_b32 s63, s60, 1\ns_lshl_b32 s63, s63, 2\ns_add_u32 s3, s3, s63\ns_add_u32 s3, s3, {FLG_OFF}")
    q += L(f"v_mov_b32 v5, s3\nv_mov_b32 v6, {BIG}\nv_cmp_eq_u32 vcc, 0, v{LANE}\nv_cndmask_b32 v{FLST}, v6, v5, vcc")
    q += L(f"s_lshl_b32 s3, s80, 7\ns_add_u32 s3, s3, {FLG_OFF}\nv_lshl_add_u32 v{FLLD}, v{P0}, 2, s3")
    q += L(f"s_lshl_b32 s3, s61, 13\ns_add_u32 s3, s3, {AGG_OFF}\nv_lshl_add_u32 v5, v{P0+1}, 4, s3\nv_cmp_gt_u32 vcc, 32, v0\nv_cndmask_b32 v{AGST}, v6, v5, vcc")
    q += L(f"s_lshl_b32 s3, s60, 15\ns_add_u32 s3, s3, {AGG_OFF}\nv_lshl_add_u32 v5, v{P0+1}, 4, s3\nv_lshl_add_u32 v{AGLD}, v{HF}, 13, v5")
    q += L(f"v_lshlrev_b32 v{SEGW}, 3, v0\nv_add_u32 v{SEGW}, {L_SCR}, v{SEGW}\nv_lshlrev_b32 v{SEGR}, 3, v{P0}\nv_add_u32 v{SEGR}, {L_SCR}, v{SEGR}")
    q += L(f"s_add_u32 s3, s65, {L_SCR}\nv_lshlrev_b32 v5, 6, v{P0}\nv_lshl_add_u32 v5, v{HF}, 5, v5\nv_add_u32 v{TRW}, s3, v5")
    q += L(f"v_bfe_u32 v5, v{LANE}, 2, 2\nv_lshl_add_u32 v5, v{HF}, 3, v5\nv_lshlrev_b32 v5, 6, v5\nv_and_b32 v7, 1, v{LANE}\nv_lshl_add_u32 v5, v7, 5, v5")
    q += L(f"v_bfe_u32 v7, v{LANE}, 4, 1\nv_lshl_add_u32 v5, v7, 4, v5\nv_bfe_u32 v7, v{LANE}, 1, 1\nv_lshl_add_u32 v5, v7, 3, v5\nv_add_u32 v{TRR}, s3, v5")
    q += L(f"s_lshl_b32 s93, s60, 2\ns_add_u32 s93, s93, {L_SCR}")
    SGS = PT+52; SGL = 32; PI = 33
    q += L(f"s_lshl_b32 s3, s69, 4\ns_add_u32 s3, s3, {STG_OFF}\nv_lshl_add_u32 v5, v{HF}, 4, s3\nv_cmp_eq_u32 vcc, 0, v{P0}\nv_cndmask_b32 v{SGS}, v6, v5, vcc")
    q += L(f"v_bfe_u32 v5, v{LANE}, 2, 1\nv_lshlrev_b32 v5, 4, v5\nv_bfe_u32 v7, v{LANE}, 3, 2\nv_lshl_add_u32 v5, v7, 2, v5\nv_and_b32 v7, 3, v{LANE}\nv_add_u32 v{PI}, v5, v7")
    q += L(f"v_xor_b32 v5, s60, v{HF}\nv_lshl_add_u32 v5, v5, 5, v{PI}\ns_lshl_b32 s3, s61, 11\ns_add_u32 s3, s3, {STG_OFF}\nv_lshl_add_u32 v{SGL}, v5, 4, s3")
    NF = PT+54
    q += L(f"v_lshrrev_b32 v5, 5, v0\nv_lshlrev_b32 v5, 4, v5\nv_cvt_f32_u32 v{NF}, v5")
    q += L(f"s_lshl_b32 s3, s60, 2\ns_sub_u32 s3, s61, s3\ns_sub_u32 s3, s3, 1\nv_sub_u32 v5, s3, v{HF}\nv_subrev_u32 v7, 2, v5")
    q += L("v_cmp_le_i32 s[96:97], 0, v5\nv_cmp_le_i32 s[98:99], 0, v7\nv_max_i32 v5, 0, v5\nv_max_i32 v7, 0, v7\nv_lshlrev_b32 v5, 7, v5\nv_lshlrev_b32 v7, 7, v7")
    q += L(f"v_cvt_f32_u32 v{NF+1}, v5\nv_cvt_f32_u32 v{NF+2}, v7")
    q += L(f"s_waitcnt lgkmcnt(0)\ns_mul_i32 s71, s71, 0x9E3779B1\ns_add_u32 s71, s71, 0x7F4A7C15\ns_mov_b32 s78, {opt.get('spin', SPIN)}\ns_mov_b32 s79, 0xffff0000")
    npre = opt.get('npre', 3)
    emit(mix(q, flat([dma(t) for t in range(2, npre)]) + (touch1 if opt.get('t1', 1) else [])))
    U = PT
    def red(v, t):
        o = []
        for m in ("quad_perm:[1,0,3,2]", "quad_perm:[2,3,0,1]", "row_half_mirror", "row_mirror"):
            o.append(f"v_add_f32_dpp v{v}, v{v}, v{v} {m} row_mask:0xf bank_mask:0xf")
        o += L(f"v_mov_b32 v{t}, v{v}\nv_permlane16_swap_b32 v{v}, v{t}\nv_add_f32 v{v}, v{v}, v{t}")
        return o
    fs = []
    for k in range(8): fs += L(f"v_lshlrev_b32 v{U+2*k}, 16, v{XR+k}\nv_and_b32 v{U+2*k+1}, s79, v{XR+k}")
    S1 = PT+16
    fs += L(f"v_add_f32 v{S1}, v{U}, v{U+1}\nv_add_f32 v{S1+1}, v{U+2}, v{U+3}")
    for k in range(4, 16): fs.append(f"v_add_f32 v{S1+(k&1)}, v{S1+(k&1)}, v{U+k}")
    fs.append(f"v_add_f32 v{S1}, v{S1}, v{S1+1}")
    fs += red(S1, S1+1)
    fs.append(f"v_mul_f32 v{S1}, 0x3b000000, v{S1}")
    for k in range(16): fs.append(f"v_sub_f32 v{U+k}, v{U+k}, v{S1}")
    fs += L(f"v_mul_f32 v{S1+2}, v{U}, v{U}\nv_mul_f32 v{S1+3}, v{U+1}, v{U+1}")
    for k in range(2, 16): fs.append(f"v_fmac_f32 v{S1+2+(k&1)}, v{U+k}, v{U+k}")
    fs.append(f"v_add_f32 v{S1+2}, v{S1+2}, v{S1+3}")
    fs += red(S1+2, S1+3)
    GQ = PT+20
    fs += L(f"v_mul_f32 v{S1+2}, 0x3b000000, v{S1+2}\nv_cvt_pk_bf16_f32 v{S1}, v{S1}, v{S1+2}\nv_and_b32 v{S1+2}, s79, v{S1}\nv_lshlrev_b32 v{GQ}, 16, v{S1}")
    z = S1+2
    fs += L(f"v_add_f32 v{z}, 0x3727c5ac, v{z}\nv_cvt_pk_bf16_f32 v{z}, v{z}, v{z}\nv_and_b32 v{z}, s79, v{z}\nv_sqrt_f32 v{z}, v{z}\nv_mov_b32 v{GQ+1}, s71\nv_cvt_pk_bf16_f32 v{z}, v{z}, v{z}\nv_and_b32 v{z}, s79, v{z}")
    fs += L(f"v_rcp_f32 v{GQ+2}, v{z}\nv_mov_b32 v{GQ+3}, s71")
    fs.append(f"buffer_store_dwordx4 {vr(GQ)}, v{SGS}, s[56:59], 0 offen sc1")
    lr, li, dt = P0+3, P0+4, P0+5
    t = P0+6; ZR, ZI = P0+10, P0+11
    fp = L(f"v_lshlrev_b32 v{lr}, 16, v{lr}\nv_lshlrev_b32 v{li}, 16, v{li}\nv_lshlrev_b32 v{dt}, 16, v{dt}")
    fp += L(f"v_mul_f32 v{dt}, {LOG2E}, v{dt}\nv_exp_f32 v{dt}, v{dt}\nv_mul_f32 v{t+1}, v{lr}, v{lr}\nv_cvt_pk_bf16_f32 v{dt}, v{dt}, v{dt}\nv_and_b32 v{dt}, s79, v{dt}")
    fp += L(f"v_mul_f32 v{ZR}, v{dt}, v{lr}\nv_mul_f32 v{ZI}, v{dt}, v{li}\nv_mul_f32 v{ZR}, {LOG2E}, v{ZR}\nv_mul_f32 v{ZI}, {INV2PI}, v{ZI}\nv_fmac_f32 v{t+1}, v{li}, v{li}\nv_rcp_f32 v{dt}, v{t+1}")
    def power(dr, di, n):
        if n is None: o = L(f"v_mov_b32 v{t}, v{ZR}\nv_mov_b32 v{t+1}, v{ZI}")
        else: o = L(f"v_mul_f32 v{t}, {n}, v{ZR}\nv_mul_f32 v{t+1}, {n}, v{ZI}")
        o += L(f"v_exp_f32 v{t}, v{t}\nv_rndne_f32 v{t+2}, v{t+1}\nv_sub_f32 v{t+1}, v{t+1}, v{t+2}\nv_cos_f32 v{t+2}, v{t+1}\nv_sin_f32 v{t+3}, v{t+1}\nv_mul_f32 v{dr}, v{t}, v{t+2}\nv_mul_f32 v{di}, v{t}, v{t+3}")
        return o
    fp += power(AR, AI, None) + power(A16R, A16I, "0x41800000") + power(PWR, PWI, f"v{NF}") + power(W0R, W0I, f"v{NF+1}") + power(W1R, W1I, f"v{NF+2}")
    fp += L(f"v_add_f32 v{t}, -1.0, v{AR}\nv_add_f32 v{dt}, v{dt}, v{dt}\nv_mul_f32 v{t+2}, v{t}, v{lr}\nv_fmac_f32 v{t+2}, v{AI}, v{li}\nv_mul_f32 v{t+3}, v{AI}, v{lr}\nv_fma_f32 v{t+3}, -v{t}, v{li}, v{t+3}")
    fp += L(f"v_mul_f32 v{GR}, v{t+2}, v{dt}\nv_mul_f32 v{GI}, v{t+3}, v{dt}")
    def sbase(t): return slot(t) % (2*SLOT)
    def bump(t):
        o = []
        if t % 2 == 0 and t not in (0, 8):
            d = 2*SLOT if (t % 6) else -4*SLOT
            regs = list(range(RO, RO+12)) if t < 8 else list(range(GA, GA+8))
            for r in regs: o.append(f"v_add_u32 v{r}, {d & 0xffffffff:#x}, v{r}")
        return o
    fcount = [0]; fmap = {}
    scount = [0]
    def newf(key):
        if key[0] < 8:
            d = GACC + 64 + 4*(scount[0] % 8); scount[0] += 1
        else:
            d = WF + 4*(fcount[0] % 8); fcount[0] += 1
        fmap[key] = d; return d
    def reads(t, c):
        o = []
        if t < 8:
            n = 4*t+c
            o.append(f"ds_read_b128 {ar(XO+4*n)}, v{RO+c} offset:{sbase(t)}")
            for m in range(2): o.append(f"ds_read_b128 {vr(newf((t,c,m)))}, v{RB+c} offset:{sbase(t)+4096*m}")
            o.append(f"ds_read_b128 {ar(XX+4*n)}, v{RX+c} offset:{sbase(t)}")
        else:
            for z in range(3):
                d = newf((t,c,z)); off = sbase(t) + 32*z; areg = GB if z == 1 else GA
                o.append([f"ds_read_b64_tr_b16 {vr(d,2)}, v{areg+c} offset:{off}", f"ds_read_b64_tr_b16 {vr(d+2,2)}, v{areg+c} offset:{off+768}"])
        return o
    def M32(acc, A, B, first): return f"v_mfma_f32_32x32x16_bf16 {vr(acc,16)}, {A}, {B}, {0 if first else vr(acc,16)}"
    def M16(acc, A, B, first): return f"v_mfma_f32_16x16x32_bf16 {vr(acc)}, {A}, {B}, {0 if first else vr(acc)}"
    def mfmas(t, c):
        o = []
        if t < 8:
            n = 4*t+c; x = ar(XO+4*n); f = n == 0
            for m in range(2):
                d = vr(fmap[(t,c,m)])
                o.append(M32(SRE if m == 0 else SIM, x, d, f))
                if c == 0: o.append(M16(CSB+4*m, vr(SEL), d, t == 0))
        else:
            n = 4*(t-8)+c; f = n == 0
            for z in range(3):
                d = vr(fmap[(t,c,z)])
                o.append([M32(GACC+32*z, d, ar(XO+4*n), f), M32(GACC+32*z+16, d, ar(XX+4*n), f)] + ([M16(CSG+4*z, vr(SEL), d, f)] if c < 2 else []))
        return o
    F = {t: [] for t in range(0, 17)}
    def step(dr, di, hr, hi, ur, ui, cr, ci):
        return L(f"v_fma_f32 v{dr}, v{cr}, v{hr}, v{ur}\nv_fma_f32 v{di}, v{cr}, v{hi}, v{ui}\nv_fma_f32 v{dr}, -v{ci}, v{hi}, v{dr}\nv_fma_f32 v{di}, v{ci}, v{hr}, v{di}")
    def stepi(dr, di, hr, hi, cr, ci, nci):
        return L(f"v_fmac_f32 v{dr}, v{cr}, v{hr}\nv_fmac_f32 v{di}, v{cr}, v{hi}\nv_fmac_f32 v{dr}, v{nci}, v{hi}\nv_fmac_f32 v{di}, v{ci}, v{hr}")
    def cs_pack(src, addr, tbl, tA, tag):
        return L(f"""v_cvt_pk_bf16_f32 v{tA}, v{src}, v{src}
        v_and_b32 v{tA}, s79, v{tA}
        v_sub_f32 v{tA+1}, v{src}, v{tA}
        v_cvt_pk_bf16_f32 v{tA+2}, v{tA}, v{tA+1}
        v_and_b32 v{tA}, s79, v{tA+2}
        v_sub_f32 v{tA+1}, v{tA+1}, v{tA}
        v_cvt_pk_bf16_f32 v{tA+1}, v{tA+1}, 0
        v_cndmask_b32 v{tA+2}, v{tA+2}, v{tA+1}, vcc""") + [(f"ds_write_b32 v{addr}, v{tA+2} offset:{tbl}", tag)]
    h1 = len(fs)//2
    F[0] = [(0, None, fs[:h1])]; F[1] = [(0, None, fs[h1:])]
    n3 = (len(fp)+3)//4
    for k in range(4): F[2+k] = [(0, None, fp[k*n3:(k+1)*n3])]
    SG = PT+60
    pollT = [f"buffer_load_dwordx4 {vr(SG)}, v{SGL}, s[56:59], 0 offen sc1"]
    F[6] = [(opt.get('tpoll', 4), opt.get('tpoll', 4)+1, pollT)]
    chkT = L(f"v_cmp_ne_u32 vcc, s71, v{SG+1}\nv_cmp_ne_u32 s[100:101], s71, v{SG+3}\ns_or_b64 vcc, vcc, s[100:101]")
    f = L(f"v_cmp_le_u32 vcc, 32, v{LANE}\nv_lshl_add_u32 v34, v{LANE}, 4, s93")
    f += cs_pack(CSB, 34, 4096, 2, "x1") + cs_pack(CSB+4, 34, 5120, 5, "x1") + [('@', "x1")]
    F[7] = [(11, None, f)]
    post = [('CHK', 'T', chkT, pollT)]
    post += L(f"v_cvt_pk_bf16_f32 v{NM}, -v{SG}, -v{SG}\nv_mov_b32 v{RS}, v{SG+2}\nv_mov_b32 v{ORS}, v{SG+2}\nv_mov_b32 v{ONM}, v{NM}")
    RT = TMP; NMF = TMP+16; CF = TMP+20; H = TMP+24
    f = L(f"v_lshlrev_b32 v5, 4, v{LANE}\nv_add_u32 v5, {L_SCR}, v5\nv_permlane32_swap_b32 v{RS}, v{ORS}\nv_permlane32_swap_b32 v{NM}, v{ONM}")
    f += L(f"s_lshl_b32 s3, s60, 7\ns_add_u32 s3, s3, {L_SCR+6144}\nv_lshl_add_u32 v6, v{PI}, 2, s3")
    f += [f"ds_write_b32 v6, v{RS}", f"ds_read_b128 {vr(CF)}, v5 offset:4096", f"ds_read_b128 {vr(H)}, v5 offset:5120"]
    f += L(f"v_lshrrev_b32 v6, 5, v{LANE}\nv_lshl_add_u32 v6, v6, 6, s3")
    for k in range(4): f.append(f"ds_read_b128 {vr(RT+4*k)}, v6 offset:{16*k}")
    for k in range(4): f.append(f"v_mov_b32 v{NMF+k}, v{NM}")
    f += ["X" + M32(SRE, vr(NMF), vr(CF), False), "X" + M32(SIM, vr(NMF), vr(H), False)]
    f += L(f"v_mul_f32 v{ORS}, v{ORS}, v{ORS}\nv_mul_f32 v{RS}, v{RS}, v{RS}") + ["#"]*10
    for r in range(16): f += L(f"v_mul_f32 v{SRE+r}, v{RT+r}, v{SRE+r}\nv_mul_f32 v{SIM+r}, v{RT+r}, v{SIM+r}")
    cur = (SRE, SIM)
    for r in range(1, 16):
        d = (H + 2*(r&1), H + 2*(r&1) + 1)
        f += step(d[0], d[1], cur[0], cur[1], SRE+r, SIM+r, AR, AI); cur = d
    f.append((f"ds_write_b64 v{SEGW}, {vr(cur[0],2)}", "sw1"))
    f += ["#"]*3 + [('@', "sw1")]
    F[8] = [(0, None, f)]
    E = TMP
    f = []
    for sg in range(8): f.append(f"ds_read_b64 {vr(E+2*sg,2)}, v{SEGR} offset:{256*sg}")
    f += L(f"v_lshrrev_b32 v2, 5, v0\nv_mov_b32 v{POR}, 0\nv_mov_b32 v{POI}, 0\nv_sub_f32 v3, 0, v{A16I}")
    cur = (E, E+1)
    for sg in range(1, 8):
        f += L(f"v_cmp_eq_u32 vcc, {sg}, v2")
        d = (E+2*sg, E+2*sg+1)
        s_ = stepi(d[0], d[1], cur[0], cur[1], A16R, A16I, 3)
        f += s_[:2] + L(f"v_cndmask_b32 v{POR}, v{POR}, v{cur[0]}, vcc\nv_cndmask_b32 v{POI}, v{POI}, v{cur[1]}, vcc") + s_[2:]
        cur = d
    f += L(f"v_mov_b32 v{H}, v{cur[0]}\nv_mov_b32 v{H+1}, s71\nv_mov_b32 v{H+2}, v{cur[1]}\nv_mov_b32 v{H+3}, s71")
    f.append(f"buffer_store_dwordx4 {vr(H)}, v{AGST}, s[56:59], 0 offen sc1")
    F[9] += [(0, 0.6, f)]
    PL = E
    polld = [f"buffer_load_dwordx4 {vr(PL)}, v{AGLD}, s[56:59], 0 offen sc1", f"buffer_load_dwordx4 {vr(PL+4)}, v{AGLD}, s[56:59], s83 offen sc1"]
    chk = L(f"""v_cmp_ne_u32 vcc, s71, v{PL+1}
    v_cmp_ne_u32 s[100:101], s71, v{PL+3}
    s_or_b64 vcc, vcc, s[100:101]
    s_and_b64 s[94:95], vcc, s[96:97]
    v_cmp_ne_u32 vcc, s71, v{PL+5}
    v_cmp_ne_u32 s[100:101], s71, v{PL+7}
    s_or_b64 vcc, vcc, s[100:101]
    s_and_b64 vcc, vcc, s[98:99]
    s_or_b64 s[94:95], s[94:95], vcc""")
    DV = TMP+16; DA = TMP+18; CA = TMP+20
    f = ["s_mov_b32 s83, 16384"]
    f += L(f"v_lshrrev_b32 v2, 3, v{LANE}\nv_and_b32 v3, 7, v{LANE}\nv_bfe_u32 v5, v2, 1, 1\nv_lshlrev_b32 v5, 2, v5\nv_xor_b32 v5, v5, v3\nv_lshlrev_b32 v5, 4, v5\nv_lshl_add_u32 v{DV}, v2, 10, v5\nv_add_u32 v{DV+1}, 7168, v{DV}")
    f += L(f"v_and_b32 v2, 31, v{LANE}\nv_lshrrev_b32 v3, 5, v{LANE}\nv_bfe_u32 v5, v2, 1, 3\nv_xor_b32 v5, v5, v3\nv_lshlrev_b32 v5, 4, v5\nv_lshl_add_u32 v5, v2, 7, v5")
    for s in range(4): f += L(f"v_xor_b32 v7, {32*s}, v5\nv_add_u32 v{CA+s}, s65, v7")
    f += L(f"v_bfe_u32 v5, v{LANE}, 2, 2\nv_lshl_add_u32 v5, v3, 2, v5\nv_lshlrev_b32 v5, 7, v5")
    f += L(f"v_bfe_u32 v7, v{LANE}, 4, 1\nv_lshl_add_u32 v5, v7, 5, v5\nv_bfe_u32 v7, v{LANE}, 1, 1\nv_lshl_add_u32 v5, v7, 4, v5\nv_bfe_u32 v7, v{LANE}, 3, 1\nv_lshl_add_u32 v5, v7, 6, v5\nv_and_b32 v7, 1, v{LANE}\nv_lshl_add_u32 v5, v7, 3, v5")
    f += L(f"s_lshl_b32 s3, s60, 5\ns_and_b32 s3, s3, 64\nv_xor_b32 v5, s3, v5\nv_xor_b32 v7, 64, v5\nv_add_u32 v{DA}, s65, v5\nv_add_u32 v{DA+1}, s65, v7")
    f += ["&" + x for x in L("s_and_b32 s3, s60, 1\ns_lshl_b32 s3, s3, 4\ns_lshl_b32 s72, 0xffff, s3\ns_mov_b32 s73, 0xffc00000\ns_cmp_eq_u32 s60, 2\ns_cselect_b32 s73, 0x3fc000, s73\ns_cmp_eq_u32 s60, 1\ns_cselect_b32 s73, 0xffc0, s73\ns_cmp_eq_u32 s60, 0\ns_cselect_b32 s73, 0xff, s73")] + ["#"]
    f += ["&" + x for x in L(f"s_mul_i32 s3, s80, {NKS*2048}\ns_add_u32 s36, s34, s3\ns_addc_u32 s37, s35, 0\ns_and_b32 s37, s37, 0xffff\ns_mov_b32 s38, {NKS*2048}\ns_mov_b32 s39, 0x20000")]
    f += ["#"]
    f += ["&" + x for x in L("s_cmp_lt_u32 s60, 2\ns_cselect_b32 s40, s14, s16\ns_cselect_b32 s41, s15, s17\ns_and_b32 s41, s41, 0xffff\ns_mov_b32 s42, %d\ns_mov_b32 s43, 0x20000" % (512*1024))]
    f += L(f"s_mov_b32 s44, s28\ns_and_b32 s45, s29, 0xffff\ns_mov_b32 s46, {1376*1024}\ns_mov_b32 s47, 0x20000")
    f += L("s_lshl_b32 s84, s81, 16\ns_and_b32 s3, s60, 1\ns_lshl_b32 s3, s3, 9\ns_add_u32 s84, s84, s3\ns_lshl_b32 s3, s60, 14\ns_and_b32 s3, s3, 32768\ns_add_u32 s84, s84, s3")
    f += L(f"s_mul_i32 s85, s60, {11*32*1024}\ns_lshl_b32 s3, s81, 7\ns_add_u32 s85, s85, s3\ns_lshl_b32 s86, s60, 15\ns_mul_i32 s87, s60, {22*2048}\ns_add_u32 s87, s87, {64*2048}")
    f += ["&" + x for x in L("s_add_u32 s6, s80, s81\ns_and_b32 s6, s6, 3\ns_and_b32 s7, s80, 3\ns_mul_i32 s7, s7, 3\ns_add_u32 s7, s7, s81\ns_sub_u32 s3, s7, 11\ns_cmp_ge_u32 s7, 11\ns_cselect_b32 s7, s3, s7")] + ["#"]
    if not opt.get('rot2', 1): f += L("s_mov_b32 s6, 0\ns_mov_b32 s7, 0")
    f += ["&" + x for x in L(f"s_and_b32 s3, s60, 1\ns_cmp_lt_u32 s62, 11\ns_cselect_b32 s63, 3, 2\ns_cselect_b32 s89, 0, {BIG}\ns_mul_i32 s3, s3, s63\ns_lshl_b32 s63, s70, 1\ns_add_u32 s3, s3, s63\ns_add_u32 s3, s3, 64\ns_lshl_b32 s90, s3, 11\ns_add_u32 s91, s90, 4096\ns_mov_b32 s92, 4096")]
    F[10] = [(0, None, f)]
    t2 = ["&" + x for x in L("s_cmp_lt_u32 s60, 2\ns_cselect_b32 s10, s14, s16\ns_cselect_b32 s11, s15, s17\ns_lshr_b32 s12, s2, 3\ns_lshl_b32 s13, s12, 1\ns_and_b32 s9, s60, 1\ns_add_u32 s13, s13, s9\ns_lshl_b32 s13, s13, 13\ns_mul_i32 s12, s12, 344\ns_mul_i32 s9, s60, 86\ns_add_u32 s12, s12, s9\ns_lshl_b32 s12, s12, 7")]
    t2 += [[f"v_lshl_add_u32 v4, v{LANE}, 7, s13", "global_load_dword a0, v4, s[10:11]"]]
    t2 += [[f"v_lshl_add_u32 v4, v{LANE}, 7, s12", "global_load_dword a1, v4, s[28:29]"]]
    t2 += [[f"v_min_u32 v4, 21, v{LANE}", "v_add_u32 v4, 64, v4", "v_lshl_add_u32 v4, v4, 7, s12", "global_load_dword a2, v4, s[28:29]"]]
    if opt.get('t2', 1): F[opt.get('t2s', 9)] += [(7, None, t2)]
    hpos = [98304, 114688, 131072, 0, 16384, 32768, 49152, 65536, 81920, 147456]
    def dmaW(h):
        base = hpos[h % 10]; o = []
        for t2 in range(2):
            if h < 8:
                if t2 == 0: o += L(f"s_add_u32 s77, s6, {h>>1}\ns_and_b32 s77, s77, 3\ns_lshl_b32 s77, s77, 7\ns_add_u32 s77, s77, s84\ns_xor_b32 s77, s77, {(h&1)*32768}")
                o += L(f"s_add_u32 m0, s65, {base + t2*2048}\ns_add_u32 s66, s77, {t2*16384}")
                for c in range(2): o.append((f"buffer_load_dwordx4 v{BV+c}, s[40:43], s66 offen offset:{c*1024} lds", f"w{h}"))
            else:
                if t2 == 0: o += L(f"s_add_u32 s77, s7, {h-8}\ns_sub_u32 s66, s77, 11\ns_cselect_b32 s77, s77, s66\ns_lshl_b32 s77, s77, 15\ns_add_u32 s77, s77, s85")
                o += L(f"s_add_u32 m0, s65, {base + t2*2048}\ns_add_u32 s66, s77, {t2*16384}")
                for c in range(2): o.append((f"buffer_load_dwordx4 v{DV+c}, s[44:47], s66 offen offset:{c*1024} lds", f"w{h}"))
        return o
    fa = [('CHK', 'A', chk, polld)]
    fa += L(f"v_cndmask_b32 v{PL}, 0, v{PL}, s[96:97]\nv_cndmask_b32 v{PL+2}, 0, v{PL+2}, s[96:97]\nv_cndmask_b32 v{PL+4}, 0, v{PL+4}, s[98:99]\nv_cndmask_b32 v{PL+6}, 0, v{PL+6}, s[98:99]")
    fa += L(f"v_mul_f32 v{H}, v{W0R}, v{PL}\nv_mul_f32 v{H+1}, v{W0R}, v{PL+2}\nv_fma_f32 v{H}, -v{W0I}, v{PL+2}, v{H}\nv_fma_f32 v{H+1}, v{W0I}, v{PL}, v{H+1}")
    fa += step(H+2, H+3, PL+4, PL+6, H, H+1, W1R, W1I)
    fa.append((f"ds_write_b64 v{SEGW}, {vr(H+2,2)} offset:2048", "sw2"))
    fa += ["#"]*3 + [('@', "sw2")]
    fb = []
    for sg in range(8): fb.append(f"ds_read_b64 {vr(E+2*sg,2)}, v{SEGR} offset:{2048+256*sg}")
    fb.append(f"v_sub_f32 v3, 0, v{AI}")
    for sg in range(1, 8): fb += L(f"v_add_f32 v{E}, v{E}, v{E+2*sg}\nv_add_f32 v{E+1}, v{E+1}, v{E+2*sg+1}")
    fb += step(H+2, H+3, E, E+1, POR, POI, PWR, PWI)
    fb += L(f"v_mul_f32 v{H}, v{GR}, v{H+2}\nv_mul_f32 v{H+1}, v{GR}, v{H+3}\nv_fma_f32 v{H}, -v{GI}, v{H+3}, v{H}\nv_fma_f32 v{H+1}, v{GI}, v{H+2}, v{H+1}")
    cur = (H, H+1)
    O = E
    for r in range(16):
        fb += stepi(SRE+r, SIM+r, cur[0], cur[1], AR, AI, 3); cur = (SRE+r, SIM+r)
        if r & 1: fb += L(f"v_cvt_pk_bf16_f32 v{O+r//2}, v{SRE+r-1}, v{SRE+r}\nv_cvt_pk_bf16_f32 v{O+8+r//2}, -v{SIM+r-1}, -v{SIM+r}")
    fg = []
    for r in range(16):
        rr, ii = SRE+r, SIM+r; u = H + 2*(r&1)
        fg += L(f"v_mul_f32 v{u}, v{GI}, v{ii}\nv_mul_f32 v{u+1}, v{GI}, v{rr}\nv_fma_f32 v{rr}, v{GR}, v{rr}, -v{u}\nv_fma_f32 v{ii}, v{GR}, v{ii}, v{u+1}")
    fc = []
    for m in range(2):
        for h in range(2): fc.append(f"ds_write_b128 v{TRW}, {vr(O+8*m+4*h)} offset:{2048*m+16*h}")
    for m in range(2):
        for s in range(2):
            d = SRE + 8*m + 4*s
            fc.append(f"ds_read_b64_tr_b16 {vr(d,2)}, v{TRR} offset:{2048*m + 1024*s}")
            fc.append(f"ds_read_b64_tr_b16 {vr(d+2,2)}, v{TRR} offset:{2048*m + 1024*s + 256}")
    fc += L("s_lshl_b32 s3, s62, 12\ns_add_u32 s63, s3, %d" % (32*2048)) + ["#"]*4
    for m in range(2):
        for s in range(2):
            d = SRE + 8*m + 4*s
            fc.append((f"buffer_store_dwordx4 {vr(d)}, v{HDOFF}, s[56:59], {'s3' if m == 0 else 's63'} offen offset:{2048*s} sc1", "hs"))
    TAGV = TMP+24; FS = TMP+25; HV = TMP+26; FG = TMP+27
    flagS = [f"v_mov_b32 v{TAGV}, s71", ('@', "hs"), f"buffer_store_dword v{TAGV}, v{FLST}, s[56:59], 0 offen sc1"]
    pollS = [f"buffer_load_dword v{FS}, v{FLLD}, s[56:59], 0 offen sc1"]
    ta = opt.get('ta', 11)
    F[9] += [(0.62, None, fg[:24])]
    F[10] = [(0, 0.4, fg[24:]), (0.4, None, F[10][0][2])]
    F[ta] += [(opt.get('pa', 6), opt.get('pa', 6)+1, polld), (0.75, None, fa)]
    F[ta+1] += [(0, None, fb)]
    F[ta+2] += [(0, 0.3, fc)]
    F[ta+3] += [(opt.get('fsa', 0.3), opt.get('fsa', 0.3)+0.1, flagS)]
    Wd = {12: dmaW(0), 13: dmaW(1)+dmaW(2), 14: dmaW(3), 15: dmaW(4)+dmaW(5)}
    NK = 38
    HV2 = POR
    hslots = [8*k for k in range(14)] + [128+8*k for k in range(14)] + [112, 120, 240, 248]
    def hreg(k): return hslots[k % 32]
    def hload(k):
        sreg, kk = ("s86", k) if k < 16 else ("s87", k-16)
        o = []
        if k < 16:
            if kk % 4 == 0: o += L(f"s_add_u32 s88, s6, {kk>>2}\ns_and_b32 s88, s88, 3\ns_lshl_b32 s88, s88, 13\ns_add_u32 s88, s88, s86")
            if kk % 4 == 2: o += L(f"s_add_u32 s88, s88, 4096")
        elif kk % 2 == 0: o += L(f"s_add_u32 s88, s7, {kk>>1}\ns_sub_u32 s8, s88, 11\ns_cselect_b32 s88, s88, s8\ns_lshl_b32 s88, s88, 12\ns_add_u32 s88, s88, s87")
        for j in range(2): o.append((f"buffer_load_dwordx4 {ar(hreg(k)+4*j)}, v{HV2+j}, s[36:39], s88 offen offset:{(kk&1)*2048} sc1", "hl"))
        return o
    chkS = L(f"v_cmp_ne_u32 vcc, s71, v{FS}\ns_and_b32 s3, vcc_lo, s72")
    f = L(f"v_cmp_le_u32 vcc, 32, v{LANE}\ns_and_b32 s3, s60, 1\ns_mul_i32 s3, s3, 3072\ns_add_u32 s63, s3, s93\nv_lshl_add_u32 v{HV}, v{LANE}, 4, s63\nv_xor_b32 v{FG}, 4, v{HV}\nv_mov_b32 v{TMP+8}, 0")
    f += L(f"s_add_u32 s3, s3, {L_SCR}\nv_lshl_add_u32 v{TMP+9}, v{LANE}, 4, s3")
    for z in range(3):
        f += cs_pack(CSG+4*z, HV, 8192+1024*z, 2 if z != 1 else 5, "x2") + [(f"ds_write_b32 v{FG}, v{TMP+8} offset:{8192+1024*z}", "x2")]
    NMO = TMP; NMX = TMP+4
    f0 = L(f"s_and_b32 s3, s60, 1\ns_lshl_b32 s3, s3, 10\nv_lshl_add_u32 v{HV2}, v{LANE}, 4, s3\nv_xor_b32 v{HV2+1}, 1024, v{HV2}")
    for k in range(4): f0 += L(f"v_mov_b32 v{NMO+k}, v{NM}\nv_mov_b32 v{NMX+k}, v{ONM}")
    ps, cs_ = opt.get('ps', 2), opt.get('cs', 20)
    nearly = opt.get('nearly', 8)
    F[14] += [(0.6, None, f0)]
    F[15] += [(ps, ps+1, pollS), (cs_, cs_+1, [('ST', 9), ('CHK', 'S', chkS, pollS), ('ST', 10)]), (25, None, f), (cs_+1, None, groups_of(flat([hload(k) for k in range(nearly)])))]
    steps = [(t, c) for t in range(16) for c in range(4)]
    segs = {}; cur = []
    def open_stage(t):
        nonlocal cur
        cur.append(('@', f"st{t}"))
        cur = ["s_barrier"] + bump(t); segs[t] = cur
    pre = cur
    open_stage(0)
    RA = opt.get('ra', 3)
    cur += [('ST', 2)]
    for k in range(RA): cur += flat(reads(0,k))
    nr = RA
    for k, (t, c) in enumerate(steps):
        ms = mfmas(t, c)
        want = min(k + RA, 31) if k < 31 else k + 1
        if t < 8:
            rs = []
            if nr <= want and nr < len(steps):
                if steps[nr][1] == 0: open_stage(steps[nr][0])
                rs = reads(*steps[nr]); nr += 1
            if (t, c) == (7, 3): cur += flat(rs) + ms + [('POST',)]
            else: cur += [ms[0]] + flat(rs)[:2] + ms[1:] + flat(rs)[2:]
        else:
            if nr < len(steps):
                if steps[nr][1] == 0: open_stage(steps[nr][0])
                rs = reads(*steps[nr]); nr += 1
                for z in range(3): cur += [ms[z][0]] + rs[z] + ms[z][1:]
            else: cur += flat(ms)
    put(p, pre)
    nd = npre
    for t in range(16):
        lst = segs[t]
        dl = []
        while nd < 16 and nd <= t+(opt.get('la', 3) if t < opt.get('lat', 8) else 4) and (nd < 6 or nd-6 <= t-2) and len(dl) < 26: dl += dma(nd); nd += 1
        dl += Wd.get(t, [])
        parts = [(a_, b_, glue(it)) for a_, b_, it in F[t]]
        if t in opt.get('nofill', []): parts = []
        if t >= 8 and opt.get('nocs'): lst = [x for x in lst if not (isinstance(x, str) and x.startswith('v_mfma_f32_16x16'))]
        if dl and t < 8 and opt.get('burst'): parts.insert(0, (0, opt['burst'], groups_of(dl)))
        elif dl: parts.append((0 if t < 8 else (1 if t != 15 else ps+1), None if t != 15 else cs_, groups_of(dl)))
        if t == 8:
            k = lst.index(('POST',))
            emit(lst[:k])
            if opt.get('sst'): stamp(p, 13)
            emit(post); lst = lst[k+1:]; st(4)
        emit(inter2(lst, parts))
        if t == 3: st(3)
        if opt.get('sst') and t < 8: stamp(p, 5+t)
        if t in (9, 11, 13): st({9:5, 11:6, 13:7}[t])
    st(8)
    p("s_waitcnt lgkmcnt(0)\ns_barrier")
    for z in range(3): p(f"ds_read_b128 {vr(WF+4*z)}, v{TMP+9} offset:{8192+1024*z}")
    p(f"v_xor_b32 v2, 1024, v{HDOFF}\nv_add_u32 v3, s89, v{HDOFF}\nv_add_u32 v4, s89, v2")
    ACC = SRE; WB = WF
    CAH = GA; DAH = GB; CAH2 = TMP+10
    for s in range(4): p(f"v_add_u32 v{CAH+s}, 65536, v{CA+s}\nv_add_u32 v{CAH2+s}, 131072, v{CA+s}")
    for nb in range(2): p(f"v_add_u32 v{DAH+nb}, 65536, v{DA+nb}\nv_add_u32 v{DAH+2+nb}, 131072, v{DA+nb}")
    for z in range(3):
        p(M32(GACC+32*z, vr(WF+4*z), vr(NMO), False)); p(M32(GACC+32*z+16, vr(WF+4*z), vr(NMX), False))
    p("s_barrier")
    rest = groups_of(flat([hload(k) for k in range(nearly, 16)]) + dmaW(6) + dmaW(7))
    ne = opt.get('ne', 2)
    for z in range(3):
        for o_ in range(2):
            for _ in range(ne):
                if rest: put(p, rest.pop(0))
            g0 = GACC + 32*z + 16*o_; rs_ = ORS if o_ else RS
            voff = (HDOFF, 2, 3, 4)[o_ + (2 if z == 2 else 0)]
            for r in range(8): p(f"v_mul_f32 v{g0+r}, v{g0+r}, v{g0+8+r}")
            for r in range(8): p(f"v_mul_f32 v{g0+r}, v{rs_}, v{g0+r}")
            for r in range(0,8,2): p(f"v_cvt_pk_bf16_f32 v{g0+8+r//2}, v{g0+r}, v{g0+r+1}")
            p(f"buffer_store_dwordx4 {vr(g0+8)}, v{voff}, s[56:59], {'s90' if z < 2 else 's91'} offen offset:{2048*(z&1)} sc1", "hg")
    st(11)
    def rd(fmt, reg, off):
        w_ = off >> 16
        if w_:
            if CA <= reg < CA+4: reg = (CAH, CAH2)[w_-1] + reg - CA
            else: reg = DAH + 2*(w_-1) + reg - DA
        return fmt % (reg, off & 0xffff)
    def wread(k):
        b = WB + 8*(k % 4); o = []
        if k < 16:
            for nb in range(2):
                h = 2*(k//4) + nb
                if k % 4 == 0: o.append(('@', f"w{h}"))
                o.append(rd(f"ds_read_b128 {vr(b+4*nb)}, v%d offset:%d", CA + k % 4, hpos[h % 10]))
        else:
            h = 8 + (k-16)//2; s = (k-16) % 2
            if s == 0: o.append(('@', f"w{h}"))
            for nb in range(2):
                for z in range(2):
                    o.append(rd(f"ds_read_b64_tr_b16 {vr(b+4*nb+2*z,2)}, v%d offset:%d", DA+nb, hpos[h % 10] + 2048*s + 1024*z))
        return o
    pollG = [f"buffer_load_dword v{FG}, v{FLLD}, s[56:59], s92 offen sc1"]
    chkG = L(f"v_cmp_ne_u32 vcc, s71, v{FG}\ns_and_b32 s3, vcc_lo, s73")
    put(p, wread(0) + wread(1))
    put(p, flat(rest))
    XB = GACC+64; SB = XB+8; DB = XB+12; EA = XB+20
    BT = GACC+32; T = GACC+48; Xr = GACC+52; Z = GACC+56
    e1 = L(f"v_and_b32 v2, 31, v{LANE}\nv_bfe_u32 v3, v2, 2, 1\nv_lshlrev_b32 v3, 4, v3\nv_lshrrev_b32 v6, 3, v2\nv_lshl_add_u32 v3, v6, 2, v3\nv_and_b32 v6, 3, v2\nv_add_u32 v3, v3, v6")
    e1 += L(f"s_lshl_b32 s3, s80, 6\ns_and_b32 s63, s60, 1\ns_lshl_b32 s63, s63, 5\ns_add_u32 s3, s3, s63\nv_add_u32 v6, s3, v3")
    e1 += L(f"s_lshl_b32 s3, s81, 6\ns_lshr_b32 s63, s60, 1\ns_lshl_b32 s63, s63, 5\ns_add_u32 s3, s3, s63\nv_lshrrev_b32 v7, 5, v{LANE}\nv_lshl_add_u32 v7, v7, 2, s3")
    e1 += L(f"v_lshl_add_u32 v2, v6, 9, v7\nv_lshlrev_b32 v{EA}, 1, v2\nv_lshlrev_b32 v{EA+1}, 2, v2\nv_lshlrev_b32 v{EA+2}, 4, v6\nv_lshlrev_b32 v{EA+3}, 1, v7\nv_add_u32 v{EA+2}, {STG_OFF}, v{EA+2}")
    for g_ in range(4):
        e1.append(f"global_load_dwordx2 {vr(XB+2*g_,2)}, v{EA}, s[4:5] offset:{16*g_}")
        e1.append(f"global_load_dwordx2 {vr(DB+2*g_,2)}, v{EA+3}, s[20:21] offset:{16*g_}")
    e1.append(f"buffer_load_dwordx4 {vr(SB)}, v{EA+2}, s[56:59], 0 offen sc1")
    e2 = []
    for g_ in range(4):
        Y = BT+4*g_; xb = XB+2*g_; db = DB+2*g_; m = SB; rs = SB+2
        e2 += L(f"v_lshlrev_b32 v{T}, 16, v{db}\nv_and_b32 v{T+1}, s79, v{db}\nv_lshlrev_b32 v{T+2}, 16, v{db+1}\nv_and_b32 v{T+3}, s79, v{db+1}")
        e2 += L(f"v_lshlrev_b32 v{Xr}, 16, v{xb}\nv_and_b32 v{Xr+1}, s79, v{xb}\nv_lshlrev_b32 v{Xr+2}, 16, v{xb+1}\nv_and_b32 v{Xr+3}, s79, v{xb+1}")
        for e in range(4): e2.append(f"v_sub_f32 v{Y+e}, v{Xr+e}, v{m}")
        rnd = L(f"v_cvt_pk_bf16_f32 v{Z}, v{Y}, v{Y+1}\nv_cvt_pk_bf16_f32 v{Z+1}, v{Y+2}, v{Y+3}\nv_lshlrev_b32 v{Y}, 16, v{Z}\nv_and_b32 v{Y+1}, s79, v{Z}\nv_lshlrev_b32 v{Y+2}, 16, v{Z+1}\nv_and_b32 v{Y+3}, s79, v{Z+1}")
        e2 += rnd
        for e in range(4): e2.append(f"v_mul_f32 v{Y+e}, v{Y+e}, v{rs}")
        e2 += rnd
        for e in range(4): e2.append(f"v_mul_f32 v{Y+e}, v{Y+e}, v{T+e}")
        e2 += rnd
        for e in range(4): e2.append(f"v_add_f32 v{Y+e}, v{Y+e}, v{Xr+e}")
    e2 += L(f"v_lshl_add_u32 v3, v{LANE}, 4, s65\nv_xor_b32 v5, 4096, v3\nv_xor_b32 v6, 8192, v3\nv_xor_b32 v7, 12288, v3")
    e2 += ["&" + x for x in L(f"s_lshl_b32 s3, s80, 3\ns_add_u32 s3, s3, s81\ns_mov_b32 s63, {BIG}\ns_cmp_eq_u32 s3, 248\ns_cselect_b32 s3, {EPOCH_OFF}, s63")]
    e2 += L(f"v_mov_b32 v2, s3\nv_mov_b32 v4, {BIG}\nv_cmp_eq_u32 vcc, 0, v0\nv_cndmask_b32 v2, v4, v2, vcc")
    e2 = glue(e2)
    kflag = opt.get('kflag', 0); kpoll = opt.get('kpoll', 10); kchk = opt.get('kchk', 13); ke1 = opt.get('ke1', 4); ke2 = opt.get('ke2', 20)
    nexth = 7
    hq = list(range(16, NK))
    per2 = (len(e2) + (NK-ke2) - 1)//(NK-ke2)
    for k in range(NK):
        hb = hreg(k); wb = WB + 8*(k % 4)
        order = [(0,1),(1,0),(1,1),(0,0)] if k == NK-1 else [(0,0),(0,1),(1,0),(1,1)]
        ms = [M32(ACC+16*(2*i+j), vr(wb+4*i), ar(hb+4*j), k == 0) for i, j in order]
        fl = wread(k+2) if k+2 < NK else []
        if k >= ke2: fl = fl + e2[(k-ke2)*per2:(k-ke2+1)*per2]
        emit(interleave(ms, fl, None))
        if k == kflag:
            if opt.get('p2st'): stamp(p, 2)
            p.wait_tag("hg"); p(f"buffer_store_dword v{TAGV}, v{FLST}, s[56:59], s92 offen sc1")
            if opt.get('p2st'): stamp(p, 3)
        if opt.get('p2st') and k in (4, 8, 16, 20, 28): stamp(p, {4:4, 8:5, 16:6, 20:7, 28:9}[k])
        done_h = (2*((k+1)//4) if k+1 <= 16 else 8 + (k+1-16)//2)
        n_ = 0
        while nexth+1 < 19 and nexth+1 - 10 < done_h and n_ < opt.get('nw', 2):
            nexth += 1; put(p, dmaW(nexth)); n_ += 1
        if k == ke1: emit(e1)
        if k == kpoll: put(p, pollG)
        if k == kchk:
            st(12); emit([('CHK', 'G', chkG, pollG)]); st(13)
        if k >= kchk:
            n_ = 0
            while hq and n_ < (8 if k == kchk else 4) and (hq[0] < 32 or hq[0] - 32 <= k):
                put(p, hload(hq.pop(0))); n_ += 1
    st(1)
    for q_ in range(1, 4):
        for g_ in range(4): p(f"ds_write_b128 v3, {vr(ACC+16*q_+4*g_)} offset:{(q_-1)*16384 + g_*1024}")
    for r in range(16): p(f"v_add_f32 v{BT+r}, v{BT+r}, v{ACC+r}")
    p("s_waitcnt lgkmcnt(0)\ns_barrier")
    for g_ in range(4):
        for q_ in range(1, 4): p(f"ds_read_b128 {vr(ACC+16*q_+4*g_)}, v{4+q_} offset:{(q_-1)*16384 + g_*1024}")
    p(f"buffer_store_dword v{TAGV}, v2, s[56:59], 0 offen sc1")
    for g_ in range(4):
        for q_ in range(1, 4):
            for e in range(4): p(f"v_add_f32 v{BT+4*g_+e}, v{BT+4*g_+e}, v{ACC+16*q_+4*g_+e}")
        p(f"global_store_dwordx4 v{EA+1}, {vr(BT+4*g_)}, s[30:31] offset:{32*g_}")
    if diag:
        p("s_waitcnt vmcnt(0)"); st(14)
        p(f"v_writelane_b32 v{SV}, s78, 15")
        stamp_flush(p, STAMP_OFF)
    p(f"{name}_done:\ns_endpgm")
    a.begin(name)
    for l in p.finalize(True): a(l)
    for sfx, ld in slow:
        a(f"{name}_slow{sfx}:\ns_sleep 1")
        for l in ld: a(l)
        a(f"s_waitcnt vmcnt(0)\ns_sub_u32 s78, s78, 1\ns_cmp_lt_i32 s78, 1\ns_cbranch_scc1 {name}_go{sfx}\ns_branch {name}_chk{sfx}")
    a.end(name, 512, 102, 256)
    return 163840

if __name__ == "__main__":
    import argparse
    ap = argparse.ArgumentParser(); ap.add_argument("out"); ap.add_argument("--diag", action="store_true")
    ap.add_argument("--xmap", type=int, default=1); ap.add_argument("--opt", type=str, default="{}")
    args = ap.parse_args()
    a = Asm()
    lds = gen(a, KN, args.diag, args.xmap, opt=eval(args.opt)); a.add_launch(KN, 256, 256, lds)
    a(".fill 2048, 4, 0xbf800000")
    open(args.out, "w").write(a.text("generated by work/gen4.py"))
```

```python
import sys; sys.path.insert(0,"work")
from g import *
from sched import *
from gen import vr, ar, srdp, put, L, load_args, interleave, LOG2E, INV2PI, BIG, NKS
from gen2 import mix, glue
STG_OFF  = 10<<20
AGG_OFF  = (10<<20) + (64<<10)
EPOCH_OFF = (10<<20) + (256<<10)
FLG_OFF  = (10<<20) + (320<<10)
STAMP_OFF = 16<<20
WS_USED = 11<<20
SLOT = 24576
L_SCR = 147456
SPIN = 200000
SV = 71
CLK = ["s_memrealtime"]
def stamp(p, slot):
    p(f"{CLK[0]} s[100:101]\ns_waitcnt lgkmcnt(0)\nv_writelane_b32 v{SV}, s100, {slot}")
def stamp_flush(p, off):
    p("s_waitcnt vmcnt(0) lgkmcnt(0)")
    p(f"s_lshl_b32 s3, s2, 6\ns_add_u32 s3, s3, {off}\nv_lshl_add_u32 v2, v0, 2, s3\nv_cmp_gt_u32 vcc, 16, v0\ns_and_saveexec_b64 s[78:79], vcc\ns_cbranch_execz L_stf")
    p(f"global_store_dword v2, v{SV}, s[34:35]\nv_readlane_b32 s3, v{SV}, 0\ns_nop 3\nv_subrev_u32 v3, s3, v{SV}\nv_lshlrev_b32 v2, 2, v0\ns_cmp_lg_u32 s2, 100\ns_cbranch_scc1 L_stf\nglobal_store_dword v2, v3, s[32:33]\nL_stf:\ns_mov_b64 exec, s[78:79]")
def flat(x):
    o = []
    for y in x:
        if isinstance(y, list): o += flat(y)
        else: o.append(y)
    return o
def srdl(d, b, nbytes): return L(f"s_mov_b32 s{d}, s{b}\ns_and_b32 s{d+1}, s{b+1}, 0xffff\ns_mov_b32 s{d+2}, {nbytes}\ns_mov_b32 s{d+3}, 0x00020000")

def groups_of(b_):
    groups = []; cur = []
    for x in b_:
        cur.append(x)
        if isinstance(x, tuple): groups.append(cur); cur = []
    return groups
def inter2(main, parts):
    ism = lambda m: isinstance(m, str) and m.startswith('v_mfma')
    nm = sum(1 for m in main if ism(m))
    P = []
    for a_, b_, it in parts:
        if isinstance(a_, float): a_ = int(round(a_*nm))
        if b_ is None: b_ = nm
        if isinstance(b_, float): b_ = int(round(b_*nm))
        assert a_ < b_ <= nm, (a_, b_, nm)
        P.append([a_, b_, it, 0])
    out = []; seen = 0
    for m in main:
        out.append(m)
        if ism(m):
            seen += 1
            for q in P:
                a_, b_, it, k = q
                if seen > a_:
                    tgt = min(len(it), (len(it)*(seen-a_) + (b_-a_) - 1)//(b_-a_))
                    out += it[k:tgt]; q[3] = max(k, tgt)
    return out

def gen(a, name, diag=False, xmap=1, codebytes=24576, opt=None):
    opt = opt or {}
    if opt.get('cyc'): CLK[0] = 's_memtime'
    p = Prog()
    LANE=1
    XV=8; RO=12; RX=16; RB=20; CSB=24; TMP=8
    BV=36; GV=38; UV=41; GA=44; GB=48
    AR,AI,A16R,A16I,PWR,PWI,GR,GI,W0R,W0I,W1R,W1I = range(52,64)
    HDOFF=64; AGST=65; AGLD=66; SEGW=67; SEGR=68; TRW=69; TRR=70; POR,POI=72,73; RS=74; NM=75; ORS=76; ONM=77; FLST=78; FLLD=79
    SEL=80; CSG=84
    SRE=96; SIM=112; GACC=128; WF=224
    PT=GACC
    XO=0; XX=128
    slot = lambda t: (t % 6)*SLOT
    stamps = opt.get('stamps', None)
    def st(k):
        if diag and (stamps is None or k in stamps): stamp(p, k)
    slow = []
    def emit(lst):
        for x in flat(lst):
            if isinstance(x, tuple) and x[0] == 'CHK':
                _, sfx, code, ld = x
                p(f"{name}_chk{sfx}:"); put(p, code); p(f"s_cbranch_scc1 {name}_slow{sfx}\n{name}_go{sfx}:")
                slow.append((sfx, ld))
            elif isinstance(x, tuple) and x[0] == 'ST': st(x[1])
            elif x == "#": pass
            elif isinstance(x, str) and x[0] in "X&": p(x[1:])
            else: put(p, [x])
    p(f"s_cmp_ge_u32 s2, 256\ns_cbranch_scc1 {name}_done")
    load_args(p)
    p("s_getpc_b64 s[76:77]")
    p(f"v_lshrrev_b32 v5, 6, v0\nv_and_b32 v{LANE}, 63, v0\ns_and_b32 s3, s2, 7\nv_readfirstlane_b32 s60, v5\ns_lshr_b32 s63, s2, 3")
    nl = codebytes//128//32
    p(f"s_mul_i32 s64, s63, {nl*128}\nv_min_u32 v2, {nl-1}, v0\nv_lshl_add_u32 v2, v2, 7, s64\nglobal_load_dword v{PT+40}, v2, s[76:77]")
    if xmap == 1:
        p("s_and_b32 s61, s3, 1\ns_lshl_b32 s61, s61, 3\ns_and_b32 s64, s63, 7\ns_add_u32 s61, s61, s64")
        p("s_lshr_b32 s62, s3, 1\ns_lshl_b32 s62, s62, 2\ns_lshr_b32 s64, s63, 3\ns_add_u32 s62, s62, s64")
    else:
        p("s_lshl_b32 s61, s3, 1\ns_lshr_b32 s64, s63, 4\ns_add_u32 s61, s61, s64\ns_and_b32 s62, s63, 15")
    p("s_lshl_b32 s76, s62, 1\ns_add_u32 s76, s76, s61\ns_and_b32 s76, s76, 7" if opt.get('rot', 1) else "s_mov_b32 s76, 0")
    p("s_lshl_b32 s80, s3, 2\ns_lshr_b32 s64, s63, 3\ns_add_u32 s80, s80, s64\ns_and_b32 s81, s63, 7")
    p(f"v_lshrrev_b32 v2, 3, v{LANE}\nv_and_b32 v3, 7, v{LANE}\nv_lshrrev_b32 v5, 1, v2\nv_xor_b32 v5, v5, v3\nv_lshlrev_b32 v5, 4, v5")
    p(f"v_lshl_add_u32 v{BV}, v2, 10, v5\nv_xor_b32 v{BV+1}, 64, v{BV}\nv_add_u32 v{BV+1}, 7168, v{BV+1}")
    p(f"v_lshrrev_b32 v6, 2, v2\nv_and_b32 v7, 3, v2\nv_lshl_add_u32 v6, v6, 4, v7\nv_lshl_add_u32 v{XV}, v6, 10, v5")
    p(f"v_xor_b32 v6, 64, v{XV}\nv_add_u32 v{XV+1}, 3072, v6\nv_add_u32 v{XV+2}, 6144, v{XV}\nv_add_u32 v{XV+3}, 9216, v6")
    p("s_lshl_b32 s64, s61, 7\ns_lshl_b32 s65, s60, 5\ns_add_u32 s64, s64, s65\ns_lshl_b32 s64, s64, 10")
    p("s_lshl_b32 s65, s60, 12")
    p("s_lshl_b32 s67, s62, 5\ns_and_b32 s68, s60, 1\ns_lshl_b32 s68, s68, 4\ns_add_u32 s67, s67, s68\ns_lshl_b32 s67, s67, 10")
    p("s_lshl_b32 s68, s60, 11\ns_add_u32 s68, s68, 16384")
    P0 = PT+24; HF = PT+42; XR = PT+44
    p(f"v_and_b32 v{P0}, 31, v0\ns_lshl_b32 s70, s62, 5\nv_add_u32 v{P0+1}, s70, v{P0}\nv_lshlrev_b32 v{P0+2}, 1, v{P0+1}\nv_lshrrev_b32 v{HF}, 5, v{LANE}")
    p(f"s_lshl_b32 s69, s61, 7\ns_lshl_b32 s3, s62, 3\ns_add_u32 s69, s69, s3\ns_lshl_b32 s3, s60, 1\ns_add_u32 s69, s69, s3\ns_lshl_b32 s3, s69, 10")
    p(f"v_lshlrev_b32 v6, 4, v{P0}\nv_lshl_add_u32 v6, v{HF}, 10, v6")
    p("s_waitcnt lgkmcnt(0)")
    srdp(p, 36, 4, 2048*1024)
    p(f"buffer_load_dwordx4 {vr(XR)}, v6, s[36:39], s3 offen\nbuffer_load_dwordx4 {vr(XR+4)}, v6, s[36:39], s3 offen offset:512")
    p("s_cmp_lt_u32 s60, 2\ns_cselect_b32 s40, s10, s12\ns_cselect_b32 s41, s11, s13\ns_and_b32 s41, s41, 0xffff\ns_mov_b32 s42, %d\ns_mov_b32 s43, 0x20000" % (512*1024))
    def dmaS(t):
        o = L(f"s_add_u32 s77, s76, {t}\ns_and_b32 s77, s77, 7\ns_lshl_b32 s77, s77, 7\ns_add_u32 m0, s65, {slot(t)}\ns_add_u32 s66, s64, s77")
        for c in range(4): o.append((f"buffer_load_dwordx4 v{XV+c}, s[36:39], s66 offen offset:{c*1024} lds", f"st{t}"))
        o += L(f"s_add_u32 m0, s68, {slot(t)}\ns_add_u32 s66, s67, s77")
        for c in range(2): o.append((f"buffer_load_dwordx4 v{BV+c}, s[40:43], s66 offen offset:{c*1024} lds", f"st{t}"))
        return o
    def dmaG(tt):
        t = 8+tt
        o = L(f"s_add_u32 s77, s76, {tt}\ns_and_b32 s77, s77, 7\ns_mul_i32 s77, s77, {64*2752}\ns_add_u32 s66, s74, s77")
        for m, (sr, vv) in enumerate(((48, GV), (52, UV))):
            o += L(f"s_add_u32 m0, s75, {slot(t) + m*3072}")
            for pp in range(3):
                o.append((f"buffer_load_dwordx4 v{vv+pp}, s[{sr}:{sr+3}], s66 offen offset:{pp*1024} lds", f"st{t}"))
        return o
    def dma(t): return dmaS(t) if t < 8 else dmaG(t-8)
    put(p, dma(0))
    if diag: p(f"v_mov_b32 v{SV}, 0")
    st(0)
    p(f"s_add_u32 s72, s34, {EPOCH_OFF}\ns_addc_u32 s73, s35, 0\ns_load_dword s71, s[72:73], 0")
    p(f"global_load_ushort v{P0+3}, v{P0+2}, s[6:7]\nglobal_load_ushort v{P0+4}, v{P0+2}, s[8:9]\nglobal_load_ushort v{P0+5}, v{P0+2}, s[18:19]")
    put(p, dma(1))
    p(f"s_cmp_lt_u32 s60, 2\ns_cselect_b32 s44, s24, s26\ns_cselect_b32 s45, s25, s27\ns_and_b32 s45, s45, 0xffff\ns_mov_b32 s47, 0x20000\ns_mov_b32 s46, {512*2752}")
    p(f"s_lshl_b32 s63, s2, 1\ns_and_b32 s3, s60, 1\ns_add_u32 s63, s63, s3\ns_mul_i32 s63, s63, 22")
    p(f"v_min_u32 v5, 21, v{LANE}\nv_add_u32 v5, s63, v5\nv_lshlrev_b32 v{PT+43}, 7, v5")
    touch1 = [(f"buffer_load_dword v{PT+41}, v{PT+43}, s[44:47], 0 offen", "t1")]
    if opt.get('ptouch'):
        sh = opt.get('psh', 18)
        p(f"v_lshlrev_b32 v5, {sh}, v{LANE}\nv_min_u32 v{PT+57}, {WS_USED-4}, v5\nv_min_u32 v{PT+58}, {4*1024*1024-4}, v5\nv_min_u32 v{PT+59}, {512*1024-4}, v5\nv_min_u32 v{PT+36}, {1376*1024-4}, v5\nv_mov_b32 v{PT+37}, 0")
        touch1 += [(f"global_load_dword v{WF}, v{PT+57}, s[34:35]", "t1"), (f"global_load_dword v{WF+1}, v{PT+58}, s[30:31]", "t1"), (f"global_load_dword v{WF+2}, v{PT+59}, s[14:15]", "t1"),
                   (f"global_load_dword v{WF+3}, v{PT+59}, s[16:17]", "t1"), (f"global_load_dword v{WF+4}, v{PT+36}, s[28:29]", "t1"), (f"global_load_dword v{WF+5}, v{PT+37}, s[20:21]", "t1")]
    q = srdl(48, 24, 512*2752) + srdl(52, 26, 512*2752) + srdl(56, 34, WS_USED)
    q += L(f"v_bfe_u32 v5, v{P0}, 1, 3\nv_xor_b32 v5, v5, v{HF}\nv_lshlrev_b32 v5, 4, v5\nv_lshl_add_u32 v5, v{P0}, 7, v5\ns_lshl_b32 s3, s60, 5\nv_xor_b32 v5, s3, v5\ns_xor_b32 s63, s65, 4096")
    for c in range(4):
        q += L(f"v_xor_b32 v6, {32*c}, v5\nv_add_u32 v{RO+c}, s65, v6\nv_add_u32 v{RX+c}, s63, v6\nv_add_u32 v{RB+c}, 16384, v6")
    q += L(f"v_bfe_u32 v5, v{LANE}, 4, 1\nv_bfe_u32 v6, v{LANE}, 2, 1\nv_cmp_eq_u32 vcc, v5, v6\nv_mov_b32 v5, 0x3f803f80\nv_cndmask_b32 v{SEL}, 0, v5, vcc")
    for e in range(1,4): q.append(f"v_mov_b32 v{SEL+e}, v{SEL}")
    q += L(f"s_cmp_lt_u32 s62, 11\ns_cselect_b32 s3, 0, 32\ns_cselect_b32 s63, 0, {BIG}")
    for pp in range(3):
        q += L(f"v_add_u32 v6, {64*pp}, v{LANE}\nv_mul_u32_u24 v7, {(65536+11)//12}, v6\nv_lshrrev_b32 v7, 16, v7\nv_mul_u32_u24 v5, 12, v7\nv_sub_u32 v6, v6, v5\nv_mul_u32_u24 v7, 2752, v7")
        if pp: q.append(f"v_subrev_u32 v7, {1024*pp}, v7")
        for m, vv in enumerate((GV, UV)):
            d = vv+pp
            if m: q.append("v_xor_b32 v6, 2, v6")
            q += L(f"v_lshl_add_u32 v{d}, v6, 4, v7\nv_cmp_le_u32 vcc, 6, v6\nv_subrev_u32 v5, s3, v{d}\nv_cndmask_b32 v{d}, v{d}, v5, vcc")
            q += L(f"v_lshrrev_b32 v4, 1, v6\nv_mov_b32 v3, 0x24\nv_bfe_u32 v4, v3, v4, 1\nv_cmp_eq_u32 vcc, 1, v4\nv_add_u32 v5, s63, v{d}\nv_cndmask_b32 v{d}, v{d}, v5, vcc")
    q += L(f"v_bfe_u32 v5, v{LANE}, 2, 2\nv_lshl_add_u32 v5, v{HF}, 3, v5\nv_mul_u32_u24 v7, 192, v5\nv_and_b32 v5, 3, v{LANE}\nv_lshl_add_u32 v7, v5, 3, v7\nv_bfe_u32 v5, v{LANE}, 4, 1")
    q += L("s_and_b32 s83, s60, 1\ns_lshl_b32 s3, s83, 6\ns_sub_u32 s63, 3104, s3\ns_add_u32 s3, s3, 3040")
    q += L(f"v_mul_u32_u24 v6, s63, v5\nv_mul_u32_u24 v4, s3, v5\nv_add_u32 v6, v6, v7\nv_add_u32 v4, v4, v7\ns_mul_i32 s83, s83, 96\ns_add_u32 s83, s83, {2*SLOT}")
    for c in range(4):
        q += L(f"s_xor_b32 s3, s60, {c}\ns_mul_i32 s3, s3, 6144\ns_add_u32 s3, s3, s83\nv_add_u32 v{GA+c}, s3, v6\nv_add_u32 v{GB+c}, s3, v4")
    q += L("s_mul_i32 s70, s62, 3\ns_lshl_b32 s74, s62, 1\ns_add_u32 s74, s74, 11\ns_cmp_lt_u32 s62, 11\ns_cselect_b32 s70, s70, s74")
    q += L(f"s_lshl_b32 s74, s70, 6\ns_mul_i32 s75, s60, {16*2752}\ns_add_u32 s74, s74, s75\ns_mul_i32 s75, s60, 6144")
    q += L(f"s_lshl_b32 s82, s61, 1\ns_lshr_b32 s63, s60, 1\ns_add_u32 s82, s82, s63\ns_mul_i32 s3, s82, {NKS*2048}\ns_and_b32 s63, s60, 1\ns_lshl_b32 s63, s63, 10\ns_add_u32 s3, s3, s63")
    q += L(f"v_lshlrev_b32 v{HDOFF}, 4, v{LANE}\nv_add_u32 v{HDOFF}, s3, v{HDOFF}")
    q += L(f"s_lshl_b32 s3, s82, 7\ns_lshl_b32 s63, s62, 3\ns_add_u32 s3, s3, s63\ns_and_b32 s63, s60, 1\ns_lshl_b32 s63, s63, 2\ns_add_u32 s3, s3, s63\ns_add_u32 s3, s3, {FLG_OFF}")
    q += L(f"v_mov_b32 v5, s3\nv_mov_b32 v6, {BIG}\nv_cmp_eq_u32 vcc, 0, v{LANE}\nv_cndmask_b32 v{FLST}, v6, v5, vcc")
    q += L(f"s_lshl_b32 s3, s80, 7\ns_add_u32 s3, s3, {FLG_OFF}\nv_lshl_add_u32 v{FLLD}, v{P0}, 2, s3")
    q += L(f"s_lshl_b32 s3, s61, 13\ns_add_u32 s3, s3, {AGG_OFF}\nv_lshl_add_u32 v5, v{P0+1}, 4, s3\nv_cmp_gt_u32 vcc, 32, v0\nv_cndmask_b32 v{AGST}, v6, v5, vcc")
    q += L(f"s_lshl_b32 s3, s60, 15\ns_add_u32 s3, s3, {AGG_OFF}\nv_lshl_add_u32 v5, v{P0+1}, 4, s3\nv_lshl_add_u32 v{AGLD}, v{HF}, 13, v5")
    q += L(f"v_lshlrev_b32 v{SEGW}, 3, v0\nv_add_u32 v{SEGW}, {L_SCR}, v{SEGW}\nv_lshlrev_b32 v{SEGR}, 3, v{P0}\nv_add_u32 v{SEGR}, {L_SCR}, v{SEGR}")
    q += L(f"s_add_u32 s3, s65, {L_SCR}\nv_lshlrev_b32 v5, 6, v{P0}\nv_lshl_add_u32 v5, v{HF}, 5, v5\nv_add_u32 v{TRW}, s3, v5")
    q += L(f"v_bfe_u32 v5, v{LANE}, 2, 2\nv_lshl_add_u32 v5, v{HF}, 3, v5\nv_lshlrev_b32 v5, 6, v5\nv_and_b32 v7, 1, v{LANE}\nv_lshl_add_u32 v5, v7, 5, v5")
    q += L(f"v_bfe_u32 v7, v{LANE}, 4, 1\nv_lshl_add_u32 v5, v7, 4, v5\nv_bfe_u32 v7, v{LANE}, 1, 1\nv_lshl_add_u32 v5, v7, 3, v5\nv_add_u32 v{TRR}, s3, v5")
    q += L(f"s_lshl_b32 s93, s60, 2\ns_add_u32 s93, s93, {L_SCR}")
    SGS = PT+52; SGL = 32; PI = 33
    q += L(f"s_lshl_b32 s3, s69, 4\ns_add_u32 s3, s3, {STG_OFF}\nv_lshl_add_u32 v5, v{HF}, 4, s3\nv_cmp_eq_u32 vcc, 0, v{P0}\nv_cndmask_b32 v{SGS}, v6, v5, vcc")
    q += L(f"v_bfe_u32 v5, v{LANE}, 2, 1\nv_lshlrev_b32 v5, 4, v5\nv_bfe_u32 v7, v{LANE}, 3, 2\nv_lshl_add_u32 v5, v7, 2, v5\nv_and_b32 v7, 3, v{LANE}\nv_add_u32 v{PI}, v5, v7")
    q += L(f"v_xor_b32 v5, s60, v{HF}\nv_lshl_add_u32 v5, v5, 5, v{PI}\ns_lshl_b32 s3, s61, 11\ns_add_u32 s3, s3, {STG_OFF}\nv_lshl_add_u32 v{SGL}, v5, 4, s3")
    NF = PT+54
    q += L(f"v_lshrrev_b32 v5, 5, v0\nv_lshlrev_b32 v5, 4, v5\nv_cvt_f32_u32 v{NF}, v5")
    q += L(f"s_lshl_b32 s3, s60, 2\ns_sub_u32 s3, s61, s3\ns_sub_u32 s3, s3, 1\nv_sub_u32 v5, s3, v{HF}\nv_subrev_u32 v7, 2, v5")
    q += L("v_cmp_le_i32 s[96:97], 0, v5\nv_cmp_le_i32 s[98:99], 0, v7\nv_max_i32 v5, 0, v5\nv_max_i32 v7, 0, v7\nv_lshlrev_b32 v5, 7, v5\nv_lshlrev_b32 v7, 7, v7")
    q += L(f"v_cvt_f32_u32 v{NF+1}, v5\nv_cvt_f32_u32 v{NF+2}, v7")
    q += L(f"s_waitcnt lgkmcnt(0)\ns_mul_i32 s71, s71, 0x9E3779B1\ns_add_u32 s71, s71, 0x7F4A7C15\ns_mov_b32 s78, {opt.get('spin', SPIN)}\ns_mov_b32 s79, 0xffff0000")
    npre = opt.get('npre', 3)
    emit(mix(q, flat([dma(t) for t in range(2, npre)]) + (touch1 if opt.get('t1', 1) else [])))
    U = PT
    def red(v, t):
        o = []
        for m in ("quad_perm:[1,0,3,2]", "quad_perm:[2,3,0,1]", "row_half_mirror", "row_mirror"):
            o.append(f"v_add_f32_dpp v{v}, v{v}, v{v} {m} row_mask:0xf bank_mask:0xf")
        o += L(f"v_mov_b32 v{t}, v{v}\nv_permlane16_swap_b32 v{v}, v{t}\nv_add_f32 v{v}, v{v}, v{t}")
        return o
    fs = []
    for k in range(8): fs += L(f"v_lshlrev_b32 v{U+2*k}, 16, v{XR+k}\nv_and_b32 v{U+2*k+1}, s79, v{XR+k}")
    S1 = PT+16
    fs += L(f"v_add_f32 v{S1}, v{U}, v{U+1}\nv_add_f32 v{S1+1}, v{U+2}, v{U+3}")
    for k in range(4, 16): fs.append(f"v_add_f32 v{S1+(k&1)}, v{S1+(k&1)}, v{U+k}")
    fs.append(f"v_add_f32 v{S1}, v{S1}, v{S1+1}")
    fs += red(S1, S1+1)
    fs.append(f"v_mul_f32 v{S1}, 0x3b000000, v{S1}")
    for k in range(16): fs.append(f"v_sub_f32 v{U+k}, v{U+k}, v{S1}")
    fs += L(f"v_mul_f32 v{S1+2}, v{U}, v{U}\nv_mul_f32 v{S1+3}, v{U+1}, v{U+1}")
    for k in range(2, 16): fs.append(f"v_fmac_f32 v{S1+2+(k&1)}, v{U+k}, v{U+k}")
    fs.append(f"v_add_f32 v{S1+2}, v{S1+2}, v{S1+3}")
    fs += red(S1+2, S1+3)
    GQ = PT+20
    fs += L(f"v_mul_f32 v{S1+2}, 0x3b000000, v{S1+2}\nv_cvt_pk_bf16_f32 v{S1}, v{S1}, v{S1+2}\nv_and_b32 v{S1+2}, s79, v{S1}\nv_lshlrev_b32 v{GQ}, 16, v{S1}")
    z = S1+2
    fs += L(f"v_add_f32 v{z}, 0x3727c5ac, v{z}\nv_cvt_pk_bf16_f32 v{z}, v{z}, v{z}\nv_and_b32 v{z}, s79, v{z}\nv_sqrt_f32 v{z}, v{z}\nv_mov_b32 v{GQ+1}, s71\nv_cvt_pk_bf16_f32 v{z}, v{z}, v{z}\nv_and_b32 v{z}, s79, v{z}")
    fs += L(f"v_rcp_f32 v{GQ+2}, v{z}\nv_mov_b32 v{GQ+3}, s71")
    fs.append(f"buffer_store_dwordx4 {vr(GQ)}, v{SGS}, s[56:59], 0 offen sc1")
    lr, li, dt = P0+3, P0+4, P0+5
    t = P0+6; ZR, ZI = P0+10, P0+11
    fp = L(f"v_lshlrev_b32 v{lr}, 16, v{lr}\nv_lshlrev_b32 v{li}, 16, v{li}\nv_lshlrev_b32 v{dt}, 16, v{dt}")
    fp += L(f"v_mul_f32 v{dt}, {LOG2E}, v{dt}\nv_exp_f32 v{dt}, v{dt}\nv_mul_f32 v{t+1}, v{lr}, v{lr}\nv_cvt_pk_bf16_f32 v{dt}, v{dt}, v{dt}\nv_and_b32 v{dt}, s79, v{dt}")
    fp += L(f"v_mul_f32 v{ZR}, v{dt}, v{lr}\nv_mul_f32 v{ZI}, v{dt}, v{li}\nv_mul_f32 v{ZR}, {LOG2E}, v{ZR}\nv_mul_f32 v{ZI}, {INV2PI}, v{ZI}\nv_fmac_f32 v{t+1}, v{li}, v{li}\nv_rcp_f32 v{dt}, v{t+1}")
    def power(dr, di, n):
        if n is None: o = L(f"v_mov_b32 v{t}, v{ZR}\nv_mov_b32 v{t+1}, v{ZI}")
        else: o = L(f"v_mul_f32 v{t}, {n}, v{ZR}\nv_mul_f32 v{t+1}, {n}, v{ZI}")
        o += L(f"v_exp_f32 v{t}, v{t}\nv_rndne_f32 v{t+2}, v{t+1}\nv_sub_f32 v{t+1}, v{t+1}, v{t+2}\nv_cos_f32 v{t+2}, v{t+1}\nv_sin_f32 v{t+3}, v{t+1}\nv_mul_f32 v{dr}, v{t}, v{t+2}\nv_mul_f32 v{di}, v{t}, v{t+3}")
        return o
    fp += power(AR, AI, None) + power(A16R, A16I, "0x41800000") + power(PWR, PWI, f"v{NF}") + power(W0R, W0I, f"v{NF+1}") + power(W1R, W1I, f"v{NF+2}")
    fp += L(f"v_add_f32 v{t}, -1.0, v{AR}\nv_add_f32 v{dt}, v{dt}, v{dt}\nv_mul_f32 v{t+2}, v{t}, v{lr}\nv_fmac_f32 v{t+2}, v{AI}, v{li}\nv_mul_f32 v{t+3}, v{AI}, v{lr}\nv_fma_f32 v{t+3}, -v{t}, v{li}, v{t+3}")
    fp += L(f"v_mul_f32 v{GR}, v{t+2}, v{dt}\nv_mul_f32 v{GI}, v{t+3}, v{dt}")
    def sbase(t): return slot(t) % (2*SLOT)
    def bump(t):
        o = []
        if t % 2 == 0 and t not in (0, 8):
            d = 2*SLOT if (t % 6) else -4*SLOT
            regs = list(range(RO, RO+12)) if t < 8 else list(range(GA, GA+8))
            for r in regs: o.append(f"v_add_u32 v{r}, {d & 0xffffffff:#x}, v{r}")
        return o
    fcount = [0]; fmap = {}
    scount = [0]
    def newf(key):
        if key[0] < 8:
            d = GACC + 64 + 4*(scount[0] % 8); scount[0] += 1
        else:
            d = WF + 4*(fcount[0] % 8); fcount[0] += 1
        fmap[key] = d; return d
    def reads(t, c):
        o = []
        if t < 8:
            n = 4*t+c
            o.append(f"ds_read_b128 {ar(XO+4*n)}, v{RO+c} offset:{sbase(t)}")
            for m in range(2): o.append(f"ds_read_b128 {vr(newf((t,c,m)))}, v{RB+c} offset:{sbase(t)+4096*m}")
            o.append(f"ds_read_b128 {ar(XX+4*n)}, v{RX+c} offset:{sbase(t)}")
        else:
            for z in range(3):
                d = newf((t,c,z)); off = sbase(t) + 32*z; areg = GB if z == 1 else GA
                o.append([f"ds_read_b64_tr_b16 {vr(d,2)}, v{areg+c} offset:{off}", f"ds_read_b64_tr_b16 {vr(d+2,2)}, v{areg+c} offset:{off+768}"])
        return o
    def M32(acc, A, B, first): return f"v_mfma_f32_32x32x16_bf16 {vr(acc,16)}, {A}, {B}, {0 if first else vr(acc,16)}"
    def M16(acc, A, B, first): return f"v_mfma_f32_16x16x32_bf16 {vr(acc)}, {A}, {B}, {0 if first else vr(acc)}"
    def mfmas(t, c):
        o = []
        if t < 8:
            n = 4*t+c; x = ar(XO+4*n); f = n == 0
            for m in range(2):
                d = vr(fmap[(t,c,m)])
                o.append(M32(SRE if m == 0 else SIM, x, d, f))
                if c == 0: o.append(M16(CSB+4*m, vr(SEL), d, t == 0))
        else:
            n = 4*(t-8)+c; f = n == 0
            for z in range(3):
                d = vr(fmap[(t,c,z)])
                o.append([M32(GACC+32*z, d, ar(XO+4*n), f), M32(GACC+32*z+16, d, ar(XX+4*n), f)] + ([M16(CSG+4*z, vr(SEL), d, f)] if c < 2 else []))
        return o
    F = {t: [] for t in range(0, 17)}
    def step(dr, di, hr, hi, ur, ui, cr, ci):
        return L(f"v_fma_f32 v{dr}, v{cr}, v{hr}, v{ur}\nv_fma_f32 v{di}, v{cr}, v{hi}, v{ui}\nv_fma_f32 v{dr}, -v{ci}, v{hi}, v{dr}\nv_fma_f32 v{di}, v{ci}, v{hr}, v{di}")
    def stepi(dr, di, hr, hi, cr, ci, nci):
        return L(f"v_fmac_f32 v{dr}, v{cr}, v{hr}\nv_fmac_f32 v{di}, v{cr}, v{hi}\nv_fmac_f32 v{dr}, v{nci}, v{hi}\nv_fmac_f32 v{di}, v{ci}, v{hr}")
    def cs_pack(src, addr, tbl, tA, tag):
        return L(f"""v_cvt_pk_bf16_f32 v{tA}, v{src}, v{src}
        v_and_b32 v{tA}, s79, v{tA}
        v_sub_f32 v{tA+1}, v{src}, v{tA}
        v_cvt_pk_bf16_f32 v{tA+2}, v{tA}, v{tA+1}
        v_and_b32 v{tA}, s79, v{tA+2}
        v_sub_f32 v{tA+1}, v{tA+1}, v{tA}
        v_cvt_pk_bf16_f32 v{tA+1}, v{tA+1}, 0
        v_cndmask_b32 v{tA+2}, v{tA+2}, v{tA+1}, vcc""") + [(f"ds_write_b32 v{addr}, v{tA+2} offset:{tbl}", tag)]
    h1 = len(fs)//2
    F[0] = [(0, None, fs[:h1])]; F[1] = [(0, None, fs[h1:])]
    n3 = (len(fp)+3)//4
    for k in range(4): F[2+k] = [(0, None, fp[k*n3:(k+1)*n3])]
    SG = PT+60
    pollT = [f"buffer_load_dwordx4 {vr(SG)}, v{SGL}, s[56:59], 0 offen sc1"]
    F[6] = [(opt.get('tpoll', 4), opt.get('tpoll', 4)+1, pollT)]
    chkT = L(f"v_cmp_ne_u32 vcc, s71, v{SG+1}\nv_cmp_ne_u32 s[100:101], s71, v{SG+3}\ns_or_b64 vcc, vcc, s[100:101]")
    f = L(f"v_cmp_le_u32 vcc, 32, v{LANE}\nv_lshl_add_u32 v34, v{LANE}, 4, s93")
    f += cs_pack(CSB, 34, 4096, 2, "x1") + cs_pack(CSB+4, 34, 5120, 5, "x1") + [('@', "x1")]
    F[7] = [(11, None, f)]
    post = [('CHK', 'T', chkT, pollT)]
    post += L(f"v_cvt_pk_bf16_f32 v{NM}, -v{SG}, -v{SG}\nv_mov_b32 v{RS}, v{SG+2}\nv_mov_b32 v{ORS}, v{SG+2}\nv_mov_b32 v{ONM}, v{NM}")
    RT = TMP; NMF = TMP+16; CF = TMP+20; H = TMP+24
    f = L(f"v_lshlrev_b32 v5, 4, v{LANE}\nv_add_u32 v5, {L_SCR}, v5\nv_permlane32_swap_b32 v{RS}, v{ORS}\nv_permlane32_swap_b32 v{NM}, v{ONM}")
    f += L(f"s_lshl_b32 s3, s60, 7\ns_add_u32 s3, s3, {L_SCR+6144}\nv_lshl_add_u32 v6, v{PI}, 2, s3")
    f += [f"ds_write_b32 v6, v{RS}", f"ds_read_b128 {vr(CF)}, v5 offset:4096", f"ds_read_b128 {vr(H)}, v5 offset:5120"]
    f += L(f"v_lshrrev_b32 v6, 5, v{LANE}\nv_lshl_add_u32 v6, v6, 6, s3")
    for k in range(4): f.append(f"ds_read_b128 {vr(RT+4*k)}, v6 offset:{16*k}")
    for k in range(4): f.append(f"v_mov_b32 v{NMF+k}, v{NM}")
    f += ["X" + M32(SRE, vr(NMF), vr(CF), False), "X" + M32(SIM, vr(NMF), vr(H), False)]
    f += L(f"v_mul_f32 v{ORS}, v{ORS}, v{ORS}\nv_mul_f32 v{RS}, v{RS}, v{RS}") + ["#"]*10
    for r in range(16): f += L(f"v_mul_f32 v{SRE+r}, v{RT+r}, v{SRE+r}\nv_mul_f32 v{SIM+r}, v{RT+r}, v{SIM+r}")
    cur = (SRE, SIM)
    for r in range(1, 16):
        d = (H + 2*(r&1), H + 2*(r&1) + 1)
        f += step(d[0], d[1], cur[0], cur[1], SRE+r, SIM+r, AR, AI); cur = d
    f.append((f"ds_write_b64 v{SEGW}, {vr(cur[0],2)}", "sw1"))
    f += ["#"]*3 + [('@', "sw1")]
    F[8] = [(0, None, f)]
    E = TMP
    f = []
    for sg in range(8): f.append(f"ds_read_b64 {vr(E+2*sg,2)}, v{SEGR} offset:{256*sg}")
    f += L(f"v_lshrrev_b32 v2, 5, v0\nv_mov_b32 v{POR}, 0\nv_mov_b32 v{POI}, 0\nv_sub_f32 v3, 0, v{A16I}")
    cur = (E, E+1)
    for sg in range(1, 8):
        f += L(f"v_cmp_eq_u32 vcc, {sg}, v2")
        d = (E+2*sg, E+2*sg+1)
        s_ = stepi(d[0], d[1], cur[0], cur[1], A16R, A16I, 3)
        f += s_[:2] + L(f"v_cndmask_b32 v{POR}, v{POR}, v{cur[0]}, vcc\nv_cndmask_b32 v{POI}, v{POI}, v{cur[1]}, vcc") + s_[2:]
        cur = d
    f += L(f"v_mov_b32 v{H}, v{cur[0]}\nv_mov_b32 v{H+1}, s71\nv_mov_b32 v{H+2}, v{cur[1]}\nv_mov_b32 v{H+3}, s71")
    f.append(f"buffer_store_dwordx4 {vr(H)}, v{AGST}, s[56:59], 0 offen sc1")
    F[9] += [(0, 0.6, f)]
    PL = E
    polld = [f"buffer_load_dwordx4 {vr(PL)}, v{AGLD}, s[56:59], 0 offen sc1", f"buffer_load_dwordx4 {vr(PL+4)}, v{AGLD}, s[56:59], s83 offen sc1"]
    chk = L(f"""v_cmp_ne_u32 vcc, s71, v{PL+1}
    v_cmp_ne_u32 s[100:101], s71, v{PL+3}
    s_or_b64 vcc, vcc, s[100:101]
    s_and_b64 s[94:95], vcc, s[96:97]
    v_cmp_ne_u32 vcc, s71, v{PL+5}
    v_cmp_ne_u32 s[100:101], s71, v{PL+7}
    s_or_b64 vcc, vcc, s[100:101]
    s_and_b64 vcc, vcc, s[98:99]
    s_or_b64 s[94:95], s[94:95], vcc""")
    DV = TMP+16; DA = TMP+18; CA = TMP+20
    f = ["s_mov_b32 s83, 16384"]
    f += L(f"v_lshrrev_b32 v2, 3, v{LANE}\nv_and_b32 v3, 7, v{LANE}\nv_bfe_u32 v5, v2, 1, 1\nv_lshlrev_b32 v5, 2, v5\nv_xor_b32 v5, v5, v3\nv_lshlrev_b32 v5, 4, v5\nv_lshl_add_u32 v{DV}, v2, 10, v5\nv_add_u32 v{DV+1}, 7168, v{DV}")
    f += L(f"v_and_b32 v2, 31, v{LANE}\nv_lshrrev_b32 v3, 5, v{LANE}\nv_bfe_u32 v5, v2, 1, 3\nv_xor_b32 v5, v5, v3\nv_lshlrev_b32 v5, 4, v5\nv_lshl_add_u32 v5, v2, 7, v5")
    for s in range(4): f += L(f"v_xor_b32 v7, {32*s}, v5\nv_add_u32 v{CA+s}, s65, v7")
    f += L(f"v_bfe_u32 v5, v{LANE}, 2, 2\nv_lshl_add_u32 v5, v3, 2, v5\nv_lshlrev_b32 v5, 7, v5")
    f += L(f"v_bfe_u32 v7, v{LANE}, 4, 1\nv_lshl_add_u32 v5, v7, 5, v5\nv_bfe_u32 v7, v{LANE}, 1, 1\nv_lshl_add_u32 v5, v7, 4, v5\nv_bfe_u32 v7, v{LANE}, 3, 1\nv_lshl_add_u32 v5, v7, 6, v5\nv_and_b32 v7, 1, v{LANE}\nv_lshl_add_u32 v5, v7, 3, v5")
    f += L(f"s_lshl_b32 s3, s60, 5\ns_and_b32 s3, s3, 64\nv_xor_b32 v5, s3, v5\nv_xor_b32 v7, 64, v5\nv_add_u32 v{DA}, s65, v5\nv_add_u32 v{DA+1}, s65, v7")
    f += ["&" + x for x in L("s_and_b32 s3, s60, 1\ns_lshl_b32 s3, s3, 4\ns_lshl_b32 s72, 0xffff, s3\ns_mov_b32 s73, 0xffc00000\ns_cmp_eq_u32 s60, 2\ns_cselect_b32 s73, 0x3fc000, s73\ns_cmp_eq_u32 s60, 1\ns_cselect_b32 s73, 0xffc0, s73\ns_cmp_eq_u32 s60, 0\ns_cselect_b32 s73, 0xff, s73")] + ["#"]
    f += ["&" + x for x in L(f"s_mul_i32 s3, s80, {NKS*2048}\ns_add_u32 s36, s34, s3\ns_addc_u32 s37, s35, 0\ns_and_b32 s37, s37, 0xffff\ns_mov_b32 s38, {NKS*2048}\ns_mov_b32 s39, 0x20000")]
    f += ["#"]
    f += ["&" + x for x in L("s_cmp_lt_u32 s60, 2\ns_cselect_b32 s40, s14, s16\ns_cselect_b32 s41, s15, s17\ns_and_b32 s41, s41, 0xffff\ns_mov_b32 s42, %d\ns_mov_b32 s43, 0x20000" % (512*1024))]
    f += L(f"s_mov_b32 s44, s28\ns_and_b32 s45, s29, 0xffff\ns_mov_b32 s46, {1376*1024}\ns_mov_b32 s47, 0x20000")
    f += L("s_lshl_b32 s84, s81, 16\ns_and_b32 s3, s60, 1\ns_lshl_b32 s3, s3, 9\ns_add_u32 s84, s84, s3\ns_lshl_b32 s3, s60, 14\ns_and_b32 s3, s3, 32768\ns_add_u32 s84, s84, s3")
    f += L(f"s_mul_i32 s85, s60, {11*32*1024}\ns_lshl_b32 s3, s81, 7\ns_add_u32 s85, s85, s3\ns_lshl_b32 s86, s60, 15\ns_mul_i32 s87, s60, {22*2048}\ns_add_u32 s87, s87, {64*2048}")
    f += ["&" + x for x in L("s_add_u32 s6, s80, s81\ns_and_b32 s6, s6, 3\ns_and_b32 s7, s80, 3\ns_mul_i32 s7, s7, 3\ns_add_u32 s7, s7, s81\ns_sub_u32 s3, s7, 11\ns_cmp_ge_u32 s7, 11\ns_cselect_b32 s7, s3, s7")] + ["#"]
    if not opt.get('rot2', 1): f += L("s_mov_b32 s6, 0\ns_mov_b32 s7, 0")
    f += ["&" + x for x in L(f"s_and_b32 s3, s60, 1\ns_cmp_lt_u32 s62, 11\ns_cselect_b32 s63, 3, 2\ns_cselect_b32 s89, 0, {BIG}\ns_mul_i32 s3, s3, s63\ns_lshl_b32 s63, s70, 1\ns_add_u32 s3, s3, s63\ns_add_u32 s3, s3, 64\ns_lshl_b32 s90, s3, 11\ns_add_u32 s91, s90, 4096\ns_mov_b32 s92, 4096")]
    F[10] = [(0, None, f)]
    t2 = ["&" + x for x in L("s_cmp_lt_u32 s60, 2\ns_cselect_b32 s10, s14, s16\ns_cselect_b32 s11, s15, s17\ns_lshr_b32 s12, s2, 3\ns_lshl_b32 s13, s12, 1\ns_and_b32 s9, s60, 1\ns_add_u32 s13, s13, s9\ns_lshl_b32 s13, s13, 13\ns_mul_i32 s12, s12, 344\ns_mul_i32 s9, s60, 86\ns_add_u32 s12, s12, s9\ns_lshl_b32 s12, s12, 7")]
    t2 += [[f"v_lshl_add_u32 v4, v{LANE}, 7, s13", "global_load_dword a0, v4, s[10:11]"]]
    t2 += [[f"v_lshl_add_u32 v4, v{LANE}, 7, s12", "global_load_dword a1, v4, s[28:29]"]]
    t2 += [[f"v_min_u32 v4, 21, v{LANE}", "v_add_u32 v4, 64, v4", "v_lshl_add_u32 v4, v4, 7, s12", "global_load_dword a2, v4, s[28:29]"]]
    if opt.get('t2', 1): F[opt.get('t2s', 9)] += [(7, None, t2)]
    hpos = [98304, 114688, 131072, 0, 16384, 32768, 49152, 65536, 81920, 147456]
    def dmaW(h):
        base = hpos[h % 10]; o = []
        for t2 in range(2):
            if h < 8:
                if t2 == 0: o += L(f"s_add_u32 s77, s6, {h>>1}\ns_and_b32 s77, s77, 3\ns_lshl_b32 s77, s77, 7\ns_add_u32 s77, s77, s84\ns_xor_b32 s77, s77, {(h&1)*32768}")
                o += L(f"s_add_u32 m0, s65, {base + t2*2048}\ns_add_u32 s66, s77, {t2*16384}")
                for c in range(2): o.append((f"buffer_load_dwordx4 v{BV+c}, s[40:43], s66 offen offset:{c*1024} lds", f"w{h}"))
            else:
                if t2 == 0: o += L(f"s_add_u32 s77, s7, {h-8}\ns_sub_u32 s66, s77, 11\ns_cselect_b32 s77, s77, s66\ns_lshl_b32 s77, s77, 15\ns_add_u32 s77, s77, s85")
                o += L(f"s_add_u32 m0, s65, {base + t2*2048}\ns_add_u32 s66, s77, {t2*16384}")
                for c in range(2): o.append((f"buffer_load_dwordx4 v{DV+c}, s[44:47], s66 offen offset:{c*1024} lds", f"w{h}"))
        return o
    fa = [('CHK', 'A', chk, polld)]
    fa += L(f"v_cndmask_b32 v{PL}, 0, v{PL}, s[96:97]\nv_cndmask_b32 v{PL+2}, 0, v{PL+2}, s[96:97]\nv_cndmask_b32 v{PL+4}, 0, v{PL+4}, s[98:99]\nv_cndmask_b32 v{PL+6}, 0, v{PL+6}, s[98:99]")
    fa += L(f"v_mul_f32 v{H}, v{W0R}, v{PL}\nv_mul_f32 v{H+1}, v{W0R}, v{PL+2}\nv_fma_f32 v{H}, -v{W0I}, v{PL+2}, v{H}\nv_fma_f32 v{H+1}, v{W0I}, v{PL}, v{H+1}")
    fa += step(H+2, H+3, PL+4, PL+6, H, H+1, W1R, W1I)
    fa.append((f"ds_write_b64 v{SEGW}, {vr(H+2,2)} offset:2048", "sw2"))
    fa += ["#"]*3 + [('@', "sw2")]
    fb = []
    for sg in range(8): fb.append(f"ds_read_b64 {vr(E+2*sg,2)}, v{SEGR} offset:{2048+256*sg}")
    fb.append(f"v_sub_f32 v3, 0, v{AI}")
    for sg in range(1, 8): fb += L(f"v_add_f32 v{E}, v{E}, v{E+2*sg}\nv_add_f32 v{E+1}, v{E+1}, v{E+2*sg+1}")
    fb += step(H+2, H+3, E, E+1, POR, POI, PWR, PWI)
    fb += L(f"v_mul_f32 v{H}, v{GR}, v{H+2}\nv_mul_f32 v{H+1}, v{GR}, v{H+3}\nv_fma_f32 v{H}, -v{GI}, v{H+3}, v{H}\nv_fma_f32 v{H+1}, v{GI}, v{H+2}, v{H+1}")
    cur = (H, H+1)
    O = E
    for r in range(16):
        fb += stepi(SRE+r, SIM+r, cur[0], cur[1], AR, AI, 3); cur = (SRE+r, SIM+r)
        if r & 1: fb += L(f"v_cvt_pk_bf16_f32 v{O+r//2}, v{SRE+r-1}, v{SRE+r}\nv_cvt_pk_bf16_f32 v{O+8+r//2}, -v{SIM+r-1}, -v{SIM+r}")
    fg = []
    for r in range(16):
        rr, ii = SRE+r, SIM+r; u = H + 2*(r&1)
        fg += L(f"v_mul_f32 v{u}, v{GI}, v{ii}\nv_mul_f32 v{u+1}, v{GI}, v{rr}\nv_fma_f32 v{rr}, v{GR}, v{rr}, -v{u}\nv_fma_f32 v{ii}, v{GR}, v{ii}, v{u+1}")
    fc = []
    for m in range(2):
        for h in range(2): fc.append(f"ds_write_b128 v{TRW}, {vr(O+8*m+4*h)} offset:{2048*m+16*h}")
    for m in range(2):
        for s in range(2):
            d = SRE + 8*m + 4*s
            fc.append(f"ds_read_b64_tr_b16 {vr(d,2)}, v{TRR} offset:{2048*m + 1024*s}")
            fc.append(f"ds_read_b64_tr_b16 {vr(d+2,2)}, v{TRR} offset:{2048*m + 1024*s + 256}")
    fc += L("s_lshl_b32 s3, s62, 12\ns_add_u32 s63, s3, %d" % (32*2048)) + ["#"]*4
    for m in range(2):
        for s in range(2):
            d = SRE + 8*m + 4*s
            fc.append((f"buffer_store_dwordx4 {vr(d)}, v{HDOFF}, s[56:59], {'s3' if m == 0 else 's63'} offen offset:{2048*s} sc1", "hs"))
    TAGV = TMP+24; FS = TMP+25; HV = TMP+26; FG = TMP+27
    flagS = [f"v_mov_b32 v{TAGV}, s71", ('@', "hs"), f"buffer_store_dword v{TAGV}, v{FLST}, s[56:59], 0 offen sc1"]
    pollS = [f"buffer_load_dword v{FS}, v{FLLD}, s[56:59], 0 offen sc1"]
    ta = opt.get('ta', 11)
    F[9] += [(0.62, None, fg[:24])]
    F[10] = [(0, 0.4, fg[24:]), (0.4, None, F[10][0][2])]
    F[ta] += [(opt.get('pa', 6), opt.get('pa', 6)+1, polld), (0.75, None, fa)]
    F[ta+1] += [(0, None, fb)]
    F[ta+2] += [(0, 0.3, fc)]
    F[ta+3] += [(opt.get('fsa', 0.3), opt.get('fsa', 0.3)+0.1, flagS)]
    Wd = {12: dmaW(0), 13: dmaW(1)+dmaW(2), 14: dmaW(3), 15: dmaW(4)+dmaW(5)}
    NK = 38
    HV2 = POR
    hslots = [8*k for k in range(14)] + [128+8*k for k in range(14)] + [112, 120, 240, 248]
    def hreg(k): return hslots[k % 32]
    def hload(k):
        sreg, kk = ("s86", k) if k < 16 else ("s87", k-16)
        o = []
        if k < 16:
            if kk % 4 == 0: o += L(f"s_add_u32 s88, s6, {kk>>2}\ns_and_b32 s88, s88, 3\ns_lshl_b32 s88, s88, 13\ns_add_u32 s88, s88, s86")
            if kk % 4 == 2: o += L(f"s_add_u32 s88, s88, 4096")
        elif kk % 2 == 0: o += L(f"s_add_u32 s88, s7, {kk>>1}\ns_sub_u32 s8, s88, 11\ns_cselect_b32 s88, s88, s8\ns_lshl_b32 s88, s88, 12\ns_add_u32 s88, s88, s87")
        for j in range(2): o.append((f"buffer_load_dwordx4 {ar(hreg(k)+4*j)}, v{HV2+j}, s[36:39], s88 offen offset:{(kk&1)*2048} sc1", "hl"))
        return o
    chkS = L(f"v_cmp_ne_u32 vcc, s71, v{FS}\ns_and_b32 s3, vcc_lo, s72")
    f = L(f"v_cmp_le_u32 vcc, 32, v{LANE}\ns_and_b32 s3, s60, 1\ns_mul_i32 s3, s3, 3072\ns_add_u32 s63, s3, s93\nv_lshl_add_u32 v{HV}, v{LANE}, 4, s63\nv_xor_b32 v{FG}, 4, v{HV}\nv_mov_b32 v{TMP+8}, 0")
    f += L(f"s_add_u32 s3, s3, {L_SCR}\nv_lshl_add_u32 v{TMP+9}, v{LANE}, 4, s3")
    for z in range(3):
        f += cs_pack(CSG+4*z, HV, 8192+1024*z, 2 if z != 1 else 5, "x2") + [(f"ds_write_b32 v{FG}, v{TMP+8} offset:{8192+1024*z}", "x2")]
    NMO = TMP; NMX = TMP+4
    f0 = L(f"s_and_b32 s3, s60, 1\ns_lshl_b32 s3, s3, 10\nv_lshl_add_u32 v{HV2}, v{LANE}, 4, s3\nv_xor_b32 v{HV2+1}, 1024, v{HV2}")
    for k in range(4): f0 += L(f"v_mov_b32 v{NMO+k}, v{NM}\nv_mov_b32 v{NMX+k}, v{ONM}")
    ps, cs_ = opt.get('ps', 2), opt.get('cs', 20)
    nearly = opt.get('nearly', 8)
    F[14] += [(0.6, None, f0)]
    F[15] += [(ps, ps+1, pollS), (cs_, cs_+1, [('ST', 9), ('CHK', 'S', chkS, pollS), ('ST', 10)]), (25, None, f), (cs_+1, None, groups_of(flat([hload(k) for k in range(nearly)])))]
    steps = [(t, c) for t in range(16) for c in range(4)]
    segs = {}; cur = []
    def open_stage(t):
        nonlocal cur
        cur.append(('@', f"st{t}"))
        cur = ["s_barrier"] + bump(t); segs[t] = cur
    pre = cur
    open_stage(0)
    RA = opt.get('ra', 3)
    cur += [('ST', 2)]
    for k in range(RA): cur += flat(reads(0,k))
    nr = RA
    for k, (t, c) in enumerate(steps):
        ms = mfmas(t, c)
        want = min(k + RA, 31) if k < 31 else k + 1
        if t < 8:
            rs = []
            if nr <= want and nr < len(steps):
                if steps[nr][1] == 0: open_stage(steps[nr][0])
                rs = reads(*steps[nr]); nr += 1
            if (t, c) == (7, 3): cur += flat(rs) + ms + [('POST',)]
            else: cur += [ms[0]] + flat(rs)[:2] + ms[1:] + flat(rs)[2:]
        else:
            if nr < len(steps):
                if steps[nr][1] == 0: open_stage(steps[nr][0])
                rs = reads(*steps[nr]); nr += 1
                for z in range(3): cur += [ms[z][0]] + rs[z] + ms[z][1:]
            else: cur += flat(ms)
    put(p, pre)
    nd = npre
    for t in range(16):
        lst = segs[t]
        dl = []
        while nd < 16 and nd <= t+(opt.get('la', 3) if t < opt.get('lat', 8) else 4) and (nd < 6 or nd-6 <= t-2) and len(dl) < 26: dl += dma(nd); nd += 1
        dl += Wd.get(t, [])
        parts = [(a_, b_, glue(it)) for a_, b_, it in F[t]]
        if t in opt.get('nofill', []): parts = []
        if t >= 8 and opt.get('nocs'): lst = [x for x in lst if not (isinstance(x, str) and x.startswith('v_mfma_f32_16x16'))]
        if dl and t < 8 and opt.get('burst'): parts.insert(0, (0, opt['burst'], groups_of(dl)))
        elif dl: parts.append((0 if t < 8 else (1 if t != 15 else ps+1), None if t != 15 else cs_, groups_of(dl)))
        if t == 8:
            k = lst.index(('POST',))
            emit(lst[:k])
            if opt.get('sst'): stamp(p, 13)
            emit(post); lst = lst[k+1:]; st(4)
        emit(inter2(lst, parts))
        if t == 3: st(3)
        if opt.get('sst') and t < 8: stamp(p, 5+t)
        if t in (9, 11, 13): st({9:5, 11:6, 13:7}[t])
    st(8)
    p("s_waitcnt lgkmcnt(0)\ns_barrier")
    for z in range(3): p(f"ds_read_b128 {vr(WF+4*z)}, v{TMP+9} offset:{8192+1024*z}")
    p(f"v_xor_b32 v2, 1024, v{HDOFF}\nv_add_u32 v3, s89, v{HDOFF}\nv_add_u32 v4, s89, v2")
    ACC = SRE; WB = WF
    CAH = GA; DAH = GB; CAH2 = TMP+10
    for s in range(4): p(f"v_add_u32 v{CAH+s}, 65536, v{CA+s}\nv_add_u32 v{CAH2+s}, 131072, v{CA+s}")
    for nb in range(2): p(f"v_add_u32 v{DAH+nb}, 65536, v{DA+nb}\nv_add_u32 v{DAH+2+nb}, 131072, v{DA+nb}")
    for z in range(3):
        p(M32(GACC+32*z, vr(WF+4*z), vr(NMO), False)); p(M32(GACC+32*z+16, vr(WF+4*z), vr(NMX), False))
    p("s_barrier")
    rest = groups_of(flat([hload(k) for k in range(nearly, 16)]) + dmaW(6) + dmaW(7))
    ne = opt.get('ne', 2)
    for z in range(3):
        for o_ in range(2):
            for _ in range(ne):
                if rest: put(p, rest.pop(0))
            g0 = GACC + 32*z + 16*o_; rs_ = ORS if o_ else RS
            voff = (HDOFF, 2, 3, 4)[o_ + (2 if z == 2 else 0)]
            for r in range(8): p(f"v_mul_f32 v{g0+r}, v{g0+r}, v{g0+8+r}")
            for r in range(8): p(f"v_mul_f32 v{g0+r}, v{rs_}, v{g0+r}")
            for r in range(0,8,2): p(f"v_cvt_pk_bf16_f32 v{g0+8+r//2}, v{g0+r}, v{g0+r+1}")
            p(f"buffer_store_dwordx4 {vr(g0+8)}, v{voff}, s[56:59], {'s90' if z < 2 else 's91'} offen offset:{2048*(z&1)} sc1", "hg")
    st(11)
    def rd(fmt, reg, off):
        w_ = off >> 16
        if w_:
            if CA <= reg < CA+4: reg = (CAH, CAH2)[w_-1] + reg - CA
            else: reg = DAH + 2*(w_-1) + reg - DA
        return fmt % (reg, off & 0xffff)
    def wread(k):
        b = WB + 8*(k % 4); o = []
        if k < 16:
            for nb in range(2):
                h = 2*(k//4) + nb
                if k % 4 == 0: o.append(('@', f"w{h}"))
                o.append(rd(f"ds_read_b128 {vr(b+4*nb)}, v%d offset:%d", CA + k % 4, hpos[h % 10]))
        else:
            h = 8 + (k-16)//2; s = (k-16) % 2
            if s == 0: o.append(('@', f"w{h}"))
            for nb in range(2):
                for z in range(2):
                    o.append(rd(f"ds_read_b64_tr_b16 {vr(b+4*nb+2*z,2)}, v%d offset:%d", DA+nb, hpos[h % 10] + 2048*s + 1024*z))
        return o
    pollG = [f"buffer_load_dword v{FG}, v{FLLD}, s[56:59], s92 offen sc1"]
    chkG = L(f"v_cmp_ne_u32 vcc, s71, v{FG}\ns_and_b32 s3, vcc_lo, s73")
    put(p, wread(0) + wread(1))
    put(p, flat(rest))
    XB = GACC+64; SB = XB+8; DB = XB+12; EA = XB+20
    BT = GACC+32; T = GACC+48; Xr = GACC+52; Z = GACC+56
    e1 = L(f"v_and_b32 v2, 31, v{LANE}\nv_bfe_u32 v3, v2, 2, 1\nv_lshlrev_b32 v3, 4, v3\nv_lshrrev_b32 v6, 3, v2\nv_lshl_add_u32 v3, v6, 2, v3\nv_and_b32 v6, 3, v2\nv_add_u32 v3, v3, v6")
    e1 += L(f"s_lshl_b32 s3, s80, 6\ns_and_b32 s63, s60, 1\ns_lshl_b32 s63, s63, 5\ns_add_u32 s3, s3, s63\nv_add_u32 v6, s3, v3")
    e1 += L(f"s_lshl_b32 s3, s81, 6\ns_lshr_b32 s63, s60, 1\ns_lshl_b32 s63, s63, 5\ns_add_u32 s3, s3, s63\nv_lshrrev_b32 v7, 5, v{LANE}\nv_lshl_add_u32 v7, v7, 2, s3")
    e1 += L(f"v_lshl_add_u32 v2, v6, 9, v7\nv_lshlrev_b32 v{EA}, 1, v2\nv_lshlrev_b32 v{EA+1}, 2, v2\nv_lshlrev_b32 v{EA+2}, 4, v6\nv_lshlrev_b32 v{EA+3}, 1, v7\nv_add_u32 v{EA+2}, {STG_OFF}, v{EA+2}")
    for g_ in range(4):
        e1.append(f"global_load_dwordx2 {vr(XB+2*g_,2)}, v{EA}, s[4:5] offset:{16*g_}")
        e1.append(f"global_load_dwordx2 {vr(DB+2*g_,2)}, v{EA+3}, s[20:21] offset:{16*g_}")
    e1.append(f"buffer_load_dwordx4 {vr(SB)}, v{EA+2}, s[56:59], 0 offen sc1")
    e2 = []
    for g_ in range(4):
        Y = BT+4*g_; xb = XB+2*g_; db = DB+2*g_; m = SB; rs = SB+2
        e2 += L(f"v_lshlrev_b32 v{T}, 16, v{db}\nv_and_b32 v{T+1}, s79, v{db}\nv_lshlrev_b32 v{T+2}, 16, v{db+1}\nv_and_b32 v{T+3}, s79, v{db+1}")
        e2 += L(f"v_lshlrev_b32 v{Xr}, 16, v{xb}\nv_and_b32 v{Xr+1}, s79, v{xb}\nv_lshlrev_b32 v{Xr+2}, 16, v{xb+1}\nv_and_b32 v{Xr+3}, s79, v{xb+1}")
        for e in range(4): e2.append(f"v_sub_f32 v{Y+e}, v{Xr+e}, v{m}")
        rnd = L(f"v_cvt_pk_bf16_f32 v{Z}, v{Y}, v{Y+1}\nv_cvt_pk_bf16_f32 v{Z+1}, v{Y+2}, v{Y+3}\nv_lshlrev_b32 v{Y}, 16, v{Z}\nv_and_b32 v{Y+1}, s79, v{Z}\nv_lshlrev_b32 v{Y+2}, 16, v{Z+1}\nv_and_b32 v{Y+3}, s79, v{Z+1}")
        e2 += rnd
        for e in range(4): e2.append(f"v_mul_f32 v{Y+e}, v{Y+e}, v{rs}")
        e2 += rnd
        for e in range(4): e2.append(f"v_mul_f32 v{Y+e}, v{Y+e}, v{T+e}")
        e2 += rnd
        for e in range(4): e2.append(f"v_add_f32 v{Y+e}, v{Y+e}, v{Xr+e}")
    e2 += L(f"v_lshl_add_u32 v3, v{LANE}, 4, s65\nv_xor_b32 v5, 4096, v3\nv_xor_b32 v6, 8192, v3\nv_xor_b32 v7, 12288, v3")
    e2 += ["&" + x for x in L(f"s_lshl_b32 s3, s80, 3\ns_add_u32 s3, s3, s81\ns_mov_b32 s63, {BIG}\ns_cmp_eq_u32 s3, 248\ns_cselect_b32 s3, {EPOCH_OFF}, s63")]
    e2 += L(f"v_mov_b32 v2, s3\nv_mov_b32 v4, {BIG}\nv_cmp_eq_u32 vcc, 0, v0\nv_cndmask_b32 v2, v4, v2, vcc")
    e2 = glue(e2)
    kflag = opt.get('kflag', 0); kpoll = opt.get('kpoll', 10); kchk = opt.get('kchk', 13); ke1 = opt.get('ke1', 4); ke2 = opt.get('ke2', 20)
    nexth = 7
    hq = list(range(16, NK))
    per2 = (len(e2) + (NK-ke2) - 1)//(NK-ke2)
    for k in range(NK):
        hb = hreg(k); wb = WB + 8*(k % 4)
        order = [(0,1),(1,0),(1,1),(0,0)] if k == NK-1 else [(0,0),(0,1),(1,0),(1,1)]
        ms = [M32(ACC+16*(2*i+j), vr(wb+4*i), ar(hb+4*j), k == 0) for i, j in order]
        fl = wread(k+2) if k+2 < NK else []
        if k >= ke2: fl = fl + e2[(k-ke2)*per2:(k-ke2+1)*per2]
        emit(interleave(ms, fl, None))
        if k == kflag:
            if opt.get('p2st'): stamp(p, 2)
            p.wait_tag("hg"); p(f"buffer_store_dword v{TAGV}, v{FLST}, s[56:59], s92 offen sc1")
            if opt.get('p2st'): stamp(p, 3)
        if opt.get('p2st') and k in (4, 8, 16, 20, 28): stamp(p, {4:4, 8:5, 16:6, 20:7, 28:9}[k])
        done_h = (2*((k+1)//4) if k+1 <= 16 else 8 + (k+1-16)//2)
        n_ = 0
        while nexth+1 < 19 and nexth+1 - 10 < done_h and n_ < opt.get('nw', 2):
            nexth += 1; put(p, dmaW(nexth)); n_ += 1
        if k == ke1: emit(e1)
        if k == kpoll: put(p, pollG)
        if k == kchk:
            st(12); emit([('CHK', 'G', chkG, pollG)]); st(13)
        if k >= kchk:
            n_ = 0
            while hq and n_ < (8 if k == kchk else 4) and (hq[0] < 32 or hq[0] - 32 <= k):
                put(p, hload(hq.pop(0))); n_ += 1
    st(1)
    for q_ in range(1, 4):
        for g_ in range(4): p(f"ds_write_b128 v3, {vr(ACC+16*q_+4*g_)} offset:{(q_-1)*16384 + g_*1024}")
    for r in range(16): p(f"v_add_f32 v{BT+r}, v{BT+r}, v{ACC+r}")
    p("s_waitcnt lgkmcnt(0)\ns_barrier")
    for g_ in range(4):
        for q_ in range(1, 4): p(f"ds_read_b128 {vr(ACC+16*q_+4*g_)}, v{4+q_} offset:{(q_-1)*16384 + g_*1024}")
    p(f"buffer_store_dword v{TAGV}, v2, s[56:59], 0 offen sc1")
    for g_ in range(4):
        for q_ in range(1, 4):
            for e in range(4): p(f"v_add_f32 v{BT+4*g_+e}, v{BT+4*g_+e}, v{ACC+16*q_+4*g_+e}")
        p(f"global_store_dwordx4 v{EA+1}, {vr(BT+4*g_)}, s[30:31] offset:{32*g_}")
    if opt.get('endst'):
        p(f"s_lshl_b32 s3, s2, 8\ns_add_u32 s3, s3, {64<<20}\nv_lshl_add_u32 v2, v{LANE}, 2, s3\nglobal_store_dword v2, v2, s[34:35]")
    if diag:
        p("s_waitcnt vmcnt(0)"); st(14)
        p(f"v_writelane_b32 v{SV}, s78, 15")
        stamp_flush(p, STAMP_OFF)
    p(f"{name}_done:\ns_endpgm")
    a.begin(name)
    for l in p.finalize(True): a(l)
    for sfx, ld in slow:
        a(f"{name}_slow{sfx}:\ns_sleep 1")
        for l in ld: a(l)
        a(f"s_waitcnt vmcnt(0)\ns_sub_u32 s78, s78, 1\ns_cmp_lt_i32 s78, 1\ns_cbranch_scc1 {name}_go{sfx}\ns_branch {name}_chk{sfx}")
    a.end(name, 512, 102, 256)
    return 163840

if __name__ == "__main__":
    import argparse
    ap = argparse.ArgumentParser(); ap.add_argument("out"); ap.add_argument("--diag", action="store_true")
    ap.add_argument("--xmap", type=int, default=1); ap.add_argument("--opt", type=str, default="{}")
    args = ap.parse_args()
    a = Asm()
    lds = gen(a, KN, args.diag, args.xmap, opt=eval(args.opt)); a.add_launch(KN, 256, 256, lds)
    a(".fill 2048, 4, 0xbf800000")
    open(args.out, "w").write(a.text("generated by work/gen4.py"))
```
